```python
import torch

def _softmax(x, axis=-1):
    return torch.softmax(x, dim=axis)
def _gelu(x):
    return torch.nn.functional.gelu(x, approximate="tanh")
def _silu(x):
    return torch.nn.functional.silu(x)
def _sigmoid(x):
    return torch.sigmoid(x)
def _layernorm(x, axis=-1, eps=1e-5):
    m = x.mean(dim=axis, keepdim=True)
    v = x.var(dim=axis, keepdim=True, unbiased=False)
    return (x - m) / torch.sqrt(v + eps)
def _scatter_add(tgt, idx, src, axis=0):
    return tgt.clone().index_add_(axis, idx, src)
def _segment_sum(src, seg, n):
    out = torch.zeros((n,) + src.shape[1:], dtype=src.dtype)
    return out.index_add_(0, seg, src)
def _pad(x, pw):
    flat = tuple(v for pair in reversed(pw) for v in pair)
    return torch.nn.functional.pad(x, flat)

kernel_name = 'parallel_sum__ssm_conv_h3__geglu_ffn__prompt'

def setup_inputs():

    _w = (lambda a: (lambda t: t.to(torch.bfloat16) if t.is_floating_point() else t)(torch.as_tensor(a)))
    def _A_setup():
        B, S, D = 1, 2048, 512
        ks = 4
        return {
            "q": _w((lambda *s: torch.randn(*s, dtype=torch.bfloat16) * 0.05)(B, S, D)),
            "k": _w((lambda *s: torch.randn(*s, dtype=torch.bfloat16) * 0.8)(B, S, D)),
            "v": _w((lambda *s: torch.randn(*s, dtype=torch.bfloat16) * 0.8)(B, S, D)),
            "shift_k": _w((lambda *s: torch.randn(*s, dtype=torch.bfloat16) * 0.8)(D, ks) * 0.5),
            "ssm_k": _w((lambda *s: torch.randn(*s, dtype=torch.bfloat16) * 0.8)(D, S) * (1.0 / S ** 0.5)),
            "ssm_D": _w((lambda *s: torch.randn(*s, dtype=torch.bfloat16) * 0.8)(D)),
        }
    _A_in = _A_setup()

    def _B_setup():
        B, S, D, F = 1, 2048, 512, 1376
        return {
            "x": _w((lambda *s: torch.randn(*s, dtype=torch.bfloat16) * 0.05)(B, S, D)),
            "w_gate": _w((lambda *s: torch.randn(*s, dtype=torch.bfloat16) * 0.05)(D, F)),
            "w_up": _w((lambda *s: torch.randn(*s, dtype=torch.bfloat16) * 0.05)(D, F)),
            "w_down": _w((lambda *s: torch.randn(*s, dtype=torch.bfloat16) * 0.05)(F, D)),
        }
    _B_in = _B_setup()

    return {
        "A_q": _A_in["q"],
        "A_k": _A_in["k"],
        "A_v": _A_in["v"],
        "A_shift_k": _A_in["shift_k"],
        "A_ssm_k": _A_in["ssm_k"],
        "A_ssm_D": _A_in["ssm_D"],
        "B_x": _B_in["x"],
        "B_w_gate": _B_in["w_gate"],
        "B_w_up": _B_in["w_up"],
        "B_w_down": _B_in["w_down"],
    }

def reference(A_q, A_k, A_v, A_shift_k, A_ssm_k, A_ssm_D, B_x, B_w_gate, B_w_up, B_w_down):
    def _A_ref(q, k, v, shift_k, ssm_k, ssm_D):
        B, S, D = q.shape
        ks = shift_k.shape[-1]
        k_pad = _pad(k, ((0, 0), (ks - 1, 0), (0, 0)))
        k_shift = torch.zeros_like(k)
        for t in range(ks):
            k_shift = k_shift + k_pad[:, t:t + S, :] * shift_k[:, ks - 1 - t][None, None, :]
        kv = k_shift * v
        L = 2 * S
        kv_pad = _pad(kv, ((0, 0), (0, S), (0, 0)))
        kf_pad = _pad(ssm_k, ((0, 0), (0, S)))
        kv_f = (lambda x, axes=(-2,-1): torch.fft.rfft2(x.float(), dim=axes))(kv_pad[:, None, :, :], axes=(1, 2))
        kf_f = (lambda x, axes=(-2,-1): torch.fft.rfft2(x.float(), dim=axes))(kf_pad[:, None, :], axes=(1, 2))
        kf_f = (lambda x, *d: x.permute(*d))(kf_f, 1, 2, 0)
        y_f = kv_f * kf_f[None, :, :, :]
        y = (lambda x, s, axes=(-2,-1): torch.fft.irfft2(x, s=s, dim=axes).to(torch.bfloat16))(y_f, (1, L), axes=(1, 2))[:, 0, :S, :]
        y = y + kv * ssm_D[None, None, :]
        return q * y

    def _B_ref(x, w_gate, w_up, w_down):
        return (_gelu(x @ w_gate) * (x @ w_up)) @ w_down

    x = A_q
    xn = _layernorm(x, axis=-1)
    return x + _A_ref(xn, A_k, A_v, A_shift_k, A_ssm_k, A_ssm_D) + _B_ref(xn, B_w_gate, B_w_up, B_w_down)
```

```python
import re

_REG = re.compile(r'^(-?)(?:abs\()?([vs])(?:(\d+)|\[(\d+):(\d+)\])\)?$')

def regs_of(tok):
    tok = tok.strip()
    if tok in ('vcc', 'vcc_lo', 'vcc_hi'):
        return {('s', 106), ('s', 107)}
    if tok == 'exec':
        return {('x', 0)}
    if tok == 'm0':
        return {('m', 0)}
    m = _REG.match(tok)
    if not m:
        return set()
    k = m.group(2)
    if m.group(3) is not None:
        return {(k, int(m.group(3)))}
    return {(k, i) for i in range(int(m.group(4)), int(m.group(5)) + 1)}

TRANS = ('v_exp_f32', 'v_log_f32', 'v_rcp_f32', 'v_rsq_f32', 'v_sqrt_f32', 'v_sin_f32', 'v_cos_f32')

class Ins:
    __slots__ = ('text', 'op', 'cls', 'dst', 'src', 'srcA', 'srcC', 'passes', 'ws', 'data', 'dpp', 'lds_dma', 'wide_store')

def split_ops(s):
    out, depth, cur = [], 0, ''
    for ch in s:
        if ch in '[(':
            depth += 1
        if ch in '])':
            depth -= 1
        if ch == ',' and depth == 0:
            out.append(cur.strip()); cur = ''
        else:
            cur += ch
    if cur.strip():
        out.append(cur.strip())
    return out

def parse(text):
    i = Ins()
    i.text = text
    t = text.split(';')[0].strip()
    parts = t.split(None, 1)
    op = parts[0]
    i.op = op
    rest = parts[1] if len(parts) > 1 else ''
    ops = split_ops(rest)
    mods = ''
    if ops:
        last = ops[-1].split(None, 1)
        if len(last) > 1:
            ops[-1] = last[0]; mods = last[1]
    i.dst, i.src, i.srcA, i.srcC, i.data = set(), set(), set(), set(), set()
    i.passes, i.ws, i.dpp, i.lds_dma, i.wide_store = 0, 1, False, False, False
    R = [regs_of(o) for o in ops]
    if op.startswith('v_mfma'):
        i.cls = 'mfma'
        i.passes = 8 if '32x32x16' in op else 4
        i.dst = R[0]; i.srcA = R[1] | R[2]; i.srcC = R[3]; i.src = i.srcA | i.srcC
    elif op.startswith('ds_'):
        i.cls = 'ds'
        if op.startswith('ds_read') or op.startswith('ds_bpermute') or op.startswith('ds_swizzle') or '_rtn_' in op:
            i.dst = R[0]; i.src = set().union(*R[1:])
        else:
            i.src = set().union(*R)
    elif op.startswith('buffer_') or op.startswith('global_'):
        i.cls = 'vmem'
        if ' lds' in (' ' + mods) or '_lds_' in op:
            i.lds_dma = True; i.src = set().union(*R) | {('m', 0)}
        elif 'atomic' in op:
            i.dst = R[0]; i.src = set().union(*R)
        elif 'load' in op:
            i.dst = R[0]; i.src = set().union(*R[1:])
        else:
            i.src = set().union(*R)
            i.data = R[0] if op.startswith('buffer_') else R[1]
            i.wide_store = op.endswith('x4') or op.endswith('x3')
    elif op.startswith('v_'):
        i.cls = 'trans' if op.replace('_e32', '').replace('_e64', '') in TRANS else 'valu'
        if op.startswith('v_dot2'):
            i.cls = 'dot'
        i.dpp = '_dpp' in op
        if op.startswith('v_permlane') and 'swap' in op:
            i.dst = R[0] | R[1]; i.src = R[0] | R[1]
        elif op.startswith(('v_add_co', 'v_sub_co', 'v_addc_co', 'v_subb_co')):
            i.dst = R[0] | R[1]; i.src = set().union(*R[2:])
        else:
            i.dst = R[0]; i.src = set().union(*R[1:]) if len(R) > 1 else set()
            if op.startswith(('v_fmac', 'v_dot2c', 'v_writelane')) or i.dpp:
                i.src |= R[0]
            if op.startswith('v_dot2c'):
                i.srcC = R[0]
            elif op.startswith('v_dot2'):
                i.srcC = R[3]
            if op.startswith('v_cndmask') and len(ops) == 3:
                i.src |= regs_of('vcc')
    elif op.startswith('s_'):
        i.cls = 'salu'
        if op == 's_nop':
            i.ws = int(ops[0], 0) + 1
        elif op.startswith(('s_cmp', 's_bitcmp', 's_waitcnt', 's_barrier', 's_branch', 's_cbranch', 's_endpgm', 's_setprio', 's_sleep')):
            i.src = set().union(*R) if R else set()
        else:
            i.dst = R[0]; i.src = set().union(*R[1:]) if len(R) > 1 else set()
            if 'saveexec' in op:
                i.dst |= {('x', 0)}
    else:
        raise ValueError('unknown instruction: ' + text)
    return i

def need(p, c):
    n = 0
    pv = p.cls in ('valu', 'trans', 'dot')
    cv = c.cls in ('valu', 'trans', 'dot')
    pdv = {r for r in p.dst if r[0] == 'v'}
    pds = {r for r in p.dst if r[0] == 's'}
    if pv:
        if c.cls == 'mfma' and pdv & c.src:
            n = max(n, 3 if p.cls == 'dot' else 2)
        if p.cls == 'trans' and cv and pdv & c.src:
            n = max(n, 1)
        if p.cls == 'trans' and c.cls in ('vmem', 'ds') and pdv & c.src:
            n = max(n, 1)
        if p.cls == 'dot' and pdv & (c.src | c.dst):
            if c.cls == 'dot' and c.op == p.op and not (pdv & (c.src - c.srcC)):
                pass
            else:
                n = max(n, 3)
        if pds:
            if cv and pds & c.src:
                n = max(n, 4 if c.op.startswith(('v_readlane', 'v_writelane')) else 2)
            if c.cls == 'vmem' and pds & c.src:
                n = max(n, 5)
            if c.cls == 'salu' and pds & c.src:
                n = max(n, 1)
            if c.op.startswith('s_cbranch_vcc') and pds & regs_of('vcc'):
                n = max(n, 1)
        if pdv & c.src:
            if c.op.startswith(('v_readlane', 'v_readfirstlane')):
                n = max(n, 1)
            if c.dpp or c.op.startswith('v_permlane'):
                n = max(n, 2)
    if p.cls == 'mfma':
        big = 12 if p.passes == 8 else 8
        if c.cls == 'mfma':
            if p.dst & c.srcA:
                n = max(n, big)
            if p.dst & c.srcC and not (p.dst == c.srcC and p.passes == c.passes):
                n = max(n, big - 2)
            if p.dst & c.dst and not (p.dst == c.dst and p.passes == c.passes):
                n = max(n, big)
        elif p.dst & (c.src | c.dst):
            n = max(n, big)
        if cv and p.srcC & c.dst:
            n = max(n, 7 if p.passes == 8 else 3)
    if p.cls == 'salu' and ('m', 0) in p.dst and c.lds_dma:
        n = max(n, 1)
    if p.cls == 'salu' and ('x', 0) in p.dst and c.dpp:
        n = max(n, 5)
    if p.wide_store and p.data & c.dst:
        n = max(n, 2)
    return n

class Prog:
    def __init__(self):
        self.out = []
        self.hist = []
        self.vm = []
        self.lg = []
        self.nins = 0
        self.after_lg0 = None
        self._in_hook = False
    def raw(self, text):
        self.out.append(text)
    def label(self, name):
        self('s_nop 1')
        self.out.append(name + ':')
        self.hist = self.hist[-16:]
    def reset_counters(self):
        self.vm = []; self.lg = []
    def reset_hist(self):
        self.hist = []
    def __call__(self, text, tag=None):
        for line in text.strip().split('\n'):
            line = line.strip()
            if not line or line.startswith(';'):
                continue
            self._one(line, tag)
    def _one(self, line, tag):
        ins = parse(line)
        dist = 0; req = 0
        for p in reversed(self.hist):
            r = need(p, ins) - dist
            if r > req:
                req = r
            dist += p.ws
            if dist >= 14:
                break
        if req > 0:
            nop = parse(f's_nop {req-1}')
            self.out.append('    ' + nop.text); self.hist.append(nop); self.nins += 1
        self.out.append('    ' + line)
        self.hist.append(ins); self.nins += 1
        if len(self.hist) > 32:
            self.hist = self.hist[-20:]
        if ins.cls == 'vmem':
            self.vm.append(tag)
        elif ins.cls == 'ds':
            self.lg.append(tag)
        if ins.op == 's_waitcnt':
            m = re.search(r'vmcnt\((\d+)\)', line)
            if m:
                n = int(m.group(1)); self.vm = self.vm[len(self.vm)-n:] if n < len(self.vm) else self.vm
                if n == 0: self.vm = []
            m = re.search(r'lgkmcnt\((\d+)\)', line)
            if m:
                n = int(m.group(1)); self.lg = self.lg[len(self.lg)-n:] if n < len(self.lg) else self.lg
                if n == 0:
                    self.lg = []
                    if self.after_lg0 and not self._in_hook:
                        self._in_hook = True; self.after_lg0(); self._in_hook = False
    def _cnt(self, lst, tag):
        idx = [i for i, t in enumerate(lst) if t == tag]
        if not idx:
            return None
        return len(lst) - 1 - idx[-1]
    def wait_vm(self, tag):
        n = self._cnt(self.vm, tag)
        if n is None:
            return
        self(f's_waitcnt vmcnt({min(n, 63)})')
    def wait_lg(self, tag):
        n = self._cnt(self.lg, tag)
        if n is None:
            return
        self(f's_waitcnt lgkmcnt({min(n, 15)})')
    def text(self):
        return '\n'.join(self.out) + '\n'

def interleave(main, extra, start=0, every=1):
    out = []; e = list(extra); k = 0
    for i, m in enumerate(main):
        out.append(m)
        if i >= start and (i - start) % every == every - 1 and k < len(e):
            out.append(e[k]); k += 1
    out.extend(e[k:])
    return out

def spread(main, extra):
    out = []; n, m = len(main), len(extra); k = 0
    for i, x in enumerate(main):
        out.append(x)
        while k < m and (k + 1) * n <= (i + 1) * m + n // 2 - (n // 2 if m > n else 0) and (k * n) <= (i + 1) * m - 1:
            out.append(extra[k]); k += 1
    out.extend(extra[k:])
    return out
```

```python
import sys, math, struct, json
from asmlib import Prog, interleave

PROF = '--prof' in sys.argv
OUT = [a for a in sys.argv[1:] if not a.startswith('--')]
OUT = OUT[0] if OUT else 'k.s'
def opt(name, default):
    for a in sys.argv[1:]:
        if a.startswith('--' + name + '='):
            return int(a.split('=')[1])
    return default
NT_KV = opt('ntkv', 1)
NT_X = opt('ntx', 0)
NT_W = opt('ntw', 0)
NT_WD = opt('ntwd', 0)
ROT = opt('rot', 2)
LA = opt('la', 12)
PRIOB = opt('priob', 2)
THR = opt('thr', 7)
SLP = opt('slp', 4)
HIMG0 = opt('himg0', 0)
SPIN = 1 << 20

KNAME = 'parallel_sum__ssm_conv_h3__geglu_ffn__prompt_kernel'

H_TB = 86 * 1024
WS_UR = 64 * H_TB
UR_P = 4224
WS_Y = WS_UR + 512 * UR_P
WS_ST = WS_Y + 256 * 8192
WS_FU = WS_ST + 2048 * 16
WS_FH = WS_FU + 8 * 4 * 32 * 8
WS_FY = WS_FH + 32 * 3 * 32 * 8
WS_PROF = WS_FY + 8 * 4 * 32 * 8
WS_SIZE = WS_PROF + 256 * 8 * 256

SLOT = 41024
G_OFF, U_OFF = 16384, 28704
CONV = 3 * SLOT
CH_SZ = 17664
HC1 = 4224
UIMG = 8448
CSUM = CONV + 2 * CH_SZ
FL = 163584
FL_WD, FL_AP, FL_BS = FL, FL + 16, FL + 32
YT = CONV
LDS_SIZE = 163840
NSTEP = 45

def wd_pos(step):
    if step >= 30:
        step -= 30
    if step < 10:
        return 0, step * 2048
    if step < 20:
        return 1, (step - 10) * 2048
    return 1, SLOT + (step - 20) * 2048
WD_BASE = [2 * SLOT, 0]
def step_unit(st):
    return 3 * (st % 15) + st // 15

def f32(x):
    return '0x%08x' % struct.unpack('<I', struct.pack('<f', x))[0]

p = Prog()
names = {'A': [], 'B': []}
grp = ['A']
pend = []
free_pairs = list(range(78, 102, 2))
def stamp(name):
    if not PROF:
        return
    if not free_pairs:
        p('s_waitcnt lgkmcnt(0)')
    sp = free_pairs.pop(0)
    names[grp[0]].append(name)
    pend.append((sp, len(names[grp[0]]) - 1))
    p(f's_memtime s[{sp}:{sp+1}]')
def flush_stamps():
    while pend:
        sp, idx = pend.pop(0)
        p(f'v_writelane_b32 v255, s{sp}, {idx}')
        free_pairs.append(sp)
p.after_lg0 = flush_stamps

def srd(d, lo, hi, nrec):
    p(f's_mov_b32 s{d}, s{lo}\ns_mov_b32 s{d+1}, s{hi}')
    p(f's_mov_b32 s{d+2}, {nrec}\ns_mov_b32 s{d+3}, 0x00020000')

def srd_off(d, lo, hi, off_sreg, nrec):
    p(f's_add_u32 s{d}, s{lo}, {off_sreg}\ns_addc_u32 s{d+1}, s{hi}, 0')
    p(f's_mov_b32 s{d+2}, {nrec}\ns_mov_b32 s{d+3}, 0x00020000')

lbl = [0]
def newlabel(s):
    lbl[0] += 1
    return f'L_{s}_{lbl[0]}'

def poll_tag(load, tagregs, mask=None, first_tag=None):
    L = newlabel('poll'); D = newlabel('pdone'); F = newlabel('pfirst')
    p(f's_mov_b32 s42, {SPIN}')
    if first_tag:
        p.wait_vm(first_tag)
        p(f's_branch {F}')
    saved = list(p.vm)
    p.label(L)
    load()
    p('s_waitcnt vmcnt(0)')
    if first_tag:
        p.vm = saved
        p.label(F)
    for n, t in enumerate(tagregs):
        p(f'v_cmp_ne_u64 vcc, s[76:77], v[{t}:{t+1}]')
        if n == 0:
            p('s_mov_b64 s[12:13], vcc')
        else:
            p('s_or_b64 s[12:13], s[12:13], vcc')
    if mask is not None:
        p(f's_and_b32 s12, s12, {mask[0]}\ns_and_b32 s13, s13, {mask[1]}')
    p('s_cmp_eq_u64 s[12:13], 0')
    p(f's_cbranch_scc1 {D}')
    p('s_sub_u32 s42, s42, 1\ns_cmp_lg_u32 s42, 0')
    if SLP:
        p(f's_sleep {SLP}')
    p(f's_cbranch_scc1 {L}')
    p.label(D)

def lds_wait(flag_addr_v, need, tmp, two=False):
    L = newlabel('lw'); D = newlabel('lwd')
    p(f's_mov_b32 s42, {SPIN}')
    p.label(L)
    if two:
        p(f'ds_read_b64 v[{tmp}:{tmp+1}], v{flag_addr_v}')
        p('s_waitcnt lgkmcnt(0)')
        p(f'v_min_u32 v{tmp}, v{tmp}, v{tmp+1}')
    else:
        p(f'ds_read_b128 v[{tmp}:{tmp+3}], v{flag_addr_v}')
        p('s_waitcnt lgkmcnt(0)')
        p(f'v_min_u32 v{tmp}, v{tmp}, v{tmp+1}\nv_min3_u32 v{tmp}, v{tmp}, v{tmp+2}, v{tmp+3}')
    p(f'v_readfirstlane_b32 s12, v{tmp}')
    p(f's_cmp_ge_u32 s12, {need}')
    p(f's_cbranch_scc1 {D}')
    p('s_sub_u32 s42, s42, 1\ns_cmp_lg_u32 s42, 0')
    p(f's_cbranch_scc1 {L}')
    p.label(D)

def get_nonce(tmp):
    L = newlabel('nonce'); D = newlabel('nonced'); F = newlabel('noncef')
    p(f's_mov_b32 s42, {SPIN}')
    p.wait_vm('nonce')
    p(f's_branch {F}')
    sv = list(p.vm)
    p.label(L)
    p(f'v_mov_b32 v{tmp}, 0')
    p(f'global_load_dwordx2 v[{tmp}:{tmp+1}], v{tmp}, s[38:39] sc1')
    p('s_waitcnt vmcnt(0)')
    p.vm = sv
    p.label(F)
    p(f'v_readfirstlane_b32 s76, v{tmp}\nv_readfirstlane_b32 s77, v{tmp+1}')
    p('s_cmp_lg_u32 s76, 0')
    p(f's_cbranch_scc1 {D}')
    p('s_sub_u32 s42, s42, 1\ns_cmp_lg_u32 s42, 0')
    p(f's_cbranch_scc1 {L}')
    p.label(D)

def run(thunks):
    for t in thunks:
        t()
def E(lst, s, tag=None): lst.append(lambda s=s: p(s, tag))

p.raw(f'; @launch grid=(256,1,1) block=(512,1,1) lds={LDS_SIZE}')
p.raw('.amdgcn_target "amdgcn-amd-amdhsa--gfx950"\n.text')
p.raw(f'.globl {KNAME}\n.p2align 8\n.type {KNAME},@function\n{KNAME}:')
p('s_getpc_b64 s[14:15]')
p.raw('L_code_start:')
p('s_cmp_ge_u32 s2, 256')
p('s_cbranch_scc1 L_end')
stamp('start')
names['B'].append('start')
p('''
s_load_dwordx16 s[16:31], s[0:1], 0
s_load_dwordx8 s[32:39], s[0:1], 64
s_load_dwordx2 s[40:41], s[0:1], 96
s_memrealtime s[76:77]
v_lshrrev_b32 v1, 6, v0
v_and_b32 v0, 63, v0
v_readfirstlane_b32 s3, v1
s_and_b32 s4, s2, 7
s_lshr_b32 s5, s2, 3
s_lshr_b32 s12, s5, 2
s_and_b32 s13, s5, 3
s_lshr_b32 s6, s4, 2
s_lshl_b32 s6, s6, 3
s_add_u32 s6, s6, s12
s_and_b32 s7, s4, 3
s_lshl_b32 s7, s7, 2
s_add_u32 s7, s7, s13
s_lshr_b32 s8, s4, 1
s_lshl_b32 s8, s8, 3
s_add_u32 s8, s8, s12
s_and_b32 s9, s4, 1
s_lshl_b32 s9, s9, 2
s_add_u32 s9, s9, s13
s_lshl_b32 s13, s13, 1
s_add_u32 s10, s12, s13
s_and_b32 s10, s10, 7
s_and_b32 s11, s3, 3
''')
if ROT == 0:
    p('s_mov_b32 s10, 0')
elif ROT == 1:
    p('s_and_b32 s10, s10, 4')
p('''
v_lshrrev_b32 v8, 3, v0
v_and_b32 v9, 7, v0
v_lshrrev_b32 v10, 4, v0
v_xor_b32 v11, v9, v10
v_lshlrev_b32 v11, 4, v11
v_lshl_add_u32 v2, v8, 10, v11
v_xor_b32 v11, 64, v11
v_lshl_add_u32 v3, v8, 10, v11
v_add_u32 v3, 8192, v3
s_mov_b32 s12, 0x15555556
s_mov_b32 s13, 2752
''')
for j in range(3):
    p(f'''
    v_add_u32 v8, {64*j}, v0
    v_mul_hi_u32 v9, v8, s12
    v_mul_u32_u24 v10, 12, v9
    v_sub_u32 v10, v8, v10
    v_mul_lo_u32 v9, v9, s13
    v_lshl_add_u32 v{4+j}, v10, 4, v9
    ''')
p('v_lshlrev_b32 v7, 4, v0')
p(f'''
s_lshl_b32 s48, s6, 17
s_lshl_b32 s12, s11, 15
s_add_u32 s48, s48, s12
s_lshr_b32 s12, s11, 1
s_mul_i32 s49, s12, {32*2752}
s_mul_i32 s13, s7, 192
s_add_u32 s49, s49, s13
s_lshl_b32 s50, s11, 12
s_mul_i32 s51, s12, 6144
s_and_b32 s13, s11, 1
s_mul_i32 s13, s13, {U_OFF-G_OFF}
s_add_u32 s51, s51, s13
s_add_u32 s51, s51, {G_OFF}
s_cmp_eq_u32 s7, 15
s_cselect_b32 s46, 0, 0x200000
s_cselect_b32 s54, 0, 1409024
s_mov_b32 s47, 0x00020000
s_mov_b32 s55, 0x00020000
''')
p('s_waitcnt lgkmcnt(0)')
p('s_lshr_b32 s0, s11, 1\ns_and_b32 s1, s11, 1')
p('s_mov_b32 s44, s16\ns_mov_b32 s45, s17')
p('s_bitcmp1_b32 s3, 0')
p('s_cselect_b32 s52, s32, s30\ns_cselect_b32 s53, s33, s31')
srd(56, 40, 41, WS_SIZE)

xf = ' nt' if NT_X else ''
wf = ' nt' if NT_W else ''
def g1_dma(c):
    slot = (c % 3) * SLOT
    t = []
    def head():
        p(f's_add_u32 s12, s10, {c}\ns_and_b32 s12, s12, 7\ns_lshl_b32 s74, s12, 7\ns_add_u32 s74, s74, s48')
        p(f's_mul_i32 s75, s12, {64*2752}\ns_add_u32 s75, s75, s49')
    t.append(head)
    for i in range(4):
        def f(i=i):
            if i == 2:
                p('s_add_u32 s74, s74, 16384')
            p(f's_add_u32 m0, s50, {slot + i*1024}')
            p(f'buffer_load_dwordx4 v{2 + (i & 1)}, s[44:47], s74 offen{xf} lds', tag=f'c{c}')
        t.append(f)
    for i in range(6):
        def f(i=i):
            if i == 3:
                p(f's_add_u32 s75, s75, {16*2752}')
            p(f's_add_u32 m0, s51, {slot + i*1024}')
            p(f'buffer_load_dwordx4 v{4 + i % 3}, s[52:55], s75 offen{wf} lds', tag=f'c{c}')
        t.append(f)
    return t

p('s_cmp_ge_u32 s3, 4')
p('s_cbranch_scc1 L_groupB')

LT = newlabel('tag')
p('s_or_b32 s12, s2, s3\ns_cmp_lg_u32 s12, 0')
p(f's_cbranch_scc1 {LT}')
p('s_or_b32 s76, s76, 1')
p('v_mov_b32 v8, s76\nv_mov_b32 v9, s77\nv_mov_b32 v10, 0')
p('s_mov_b64 exec, 1')
p('global_store_dwordx2 v10, v[8:9], s[38:39] sc1')
p('s_mov_b64 exec, -1')
p.label(LT)
p.reset_counters()
p(f'v_mov_b32 v8, 0\nv_lshlrev_b32 v9, 2, v0\nv_add_u32 v9, {FL}, v9')
p('ds_write_b32 v9, v8')
p(f'''
v_and_b32 v20, 31, v0
v_lshrrev_b32 v21, 5, v0
v_bfe_u32 v22, v0, 1, 3
v_xor_b32 v22, v21, v22
s_lshl_b32 s42, s0, 1
v_xor_b32 v22, s42, v22
s_lshl_b32 s42, s0, 13
v_lshl_add_u32 v20, v20, 7, s42
''')
for s in range(4):
    p(f'v_xor_b32 v23, {2*s}, v22\nv_lshl_add_u32 v{8+s}, v23, 4, v20\nv_add_u32 v{12+s}, {2*SLOT}, v{8+s}')
p(f'''
v_bfe_u32 v20, v0, 4, 1
v_mul_u32_u24 v20, {U_OFF-G_OFF}, v20
v_bfe_u32 v22, v0, 2, 2
v_lshl_add_u32 v22, v21, 3, v22
v_mul_u32_u24 v22, 192, v22
v_and_b32 v23, 3, v0
v_lshl_add_u32 v20, v23, 3, v20
s_mul_i32 s42, s1, 96
s_add_u32 s42, s42, {G_OFF}
v_add3_u32 v20, v20, v22, s42
s_mul_i32 s42, s0, 3072
v_add_u32 v16, s42, v20
v_subrev_u32 v17, s42, v20
v_add_u32 v18, {2*SLOT}, v16
v_add_u32 v19, {2*SLOT}, v17
v_lshrrev_b32 v20, 2, v0
v_lshrrev_b32 v21, 4, v0
v_xor_b32 v20, v20, v21
v_and_b32 v20, 1, v20
v_cmp_eq_u32 vcc, 0, v20
v_mov_b32 v21, 0x3f803f80
v_cndmask_b32 v36, 0, v21, vcc
v_mov_b32 v37, v36
v_mov_b32 v38, v36
v_mov_b32 v39, v36
''')
run(g1_dma(0)); run(g1_dma(1))
stamp('issued01')
ACC = 128
def acc(tbk, j): return ACC + 16 * (3 * tbk + j)
def FS(g): return 64 + 20 * (g % 3)
def g1_reads(g):
    c, s = divmod(g, 4)
    slot = c % 3
    xa = (12 if slot == 2 else 8) + s
    wa = (18 if slot == 2 else 16) + (s & 1)
    so = SLOT if slot == 1 else 0
    b = FS(g)
    def xr(tbk): return lambda: p(f'ds_read_b128 v[{b+4*tbk}:{b+4*tbk+3}], v{xa} offset:{so + 4096*tbk}', tag=f'r{g}')
    def wr(j, h): return lambda: p(f'ds_read_b64_tr_b16 v[{b+8+4*j+2*h}:{b+9+4*j+2*h}], v{wa} offset:{so + s*3072 + j*32 + h*768}', tag=f'r{g}')
    return [xr(0), wr(0, 0), wr(0, 1), xr(1), wr(1, 0), wr(1, 1), wr(2, 0), wr(2, 1)]
def g1_mfma(g):
    b = FS(g); t = []
    for j in range(3):
        for tbk in range(2):
            a = acc(tbk, j)
            cin = '0' if g == 0 else f'v[{a}:{a+15}]'
            t.append(lambda a=a, j=j, tbk=tbk, cin=cin: p(f'v_mfma_f32_32x32x16_bf16 v[{a}:{a+15}], v[{b+8+4*j}:{b+11+4*j}], v[{b+4*tbk}:{b+4*tbk+3}], {cin}'))
    return t
def csum(ge, j):
    b = FS(ge)
    cin = '0' if ge == 0 else f'v[{24+4*j}:{27+4*j}]'
    p(f'v_mfma_f32_16x16x32_bf16 v[{24+4*j}:{27+4*j}], v[36:39], v[{b+8+4*j}:{b+11+4*j}], {cin}')

p.wait_vm('c0')
p('s_waitcnt lgkmcnt(0)')
p('s_barrier')
stamp('bar0')
run(g1_reads(0))
for g in range(32):
    c, s = divmod(g, 4)
    p('s_waitcnt lgkmcnt(0)')
    if s == 3 and c < 7:
        if c == 0:
            p.wait_vm('c1')
        p('s_barrier')
        stamp(f'bar{c+1}')
    if g == 16:
        p(f'v_mov_b32 v22, 0')
        p('global_load_dwordx2 v[22:23], v22, s[38:39] sc1', tag='nonce')
    if g == 24:
        p(f'''
        s_lshl_b32 s12, s6, 11
        s_lshl_b32 s13, s0, 10
        s_add_u32 s12, s12, s13
        s_add_u32 s74, s12, {WS_ST}
        v_and_b32 v1, 31, v0
        v_lshlrev_b32 v1, 4, v1
        ''')
        def ld_stats(tag=None):
            p('buffer_load_dwordx4 v[40:43], v1, s[56:59], s74 offen sc1', tag)
            p('buffer_load_dwordx4 v[44:47], v1, s[56:59], s74 offen offset:512 sc1', tag)
        ld_stats('st')
    m = g1_mfma(g)
    r = g1_reads(g + 1) if g < 31 else []
    for k in range(6):
        m[k]()
        for x in r[2 * k:2 * k + 2]:
            x()
        if (g & 1) == 0 and k in (1, 4):
            csum(g, 0 if k == 1 else 1)
        if (g & 1) == 1 and k == 2:
            csum(g - 1, 2)
stamp('g1end')
p(f'''
s_mul_i32 s12, s11, 768
s_add_u32 s12, s12, {CSUM}
v_lshl_add_u32 v20, v0, 2, s12
s_xor_b32 s13, s11, 2
s_mul_i32 s13, s13, 768
s_add_u32 s13, s13, {CSUM}
v_lshl_add_u32 v21, v0, 2, s13
ds_write_b32 v20, v24
ds_write_b32 v20, v28 offset:256
ds_write_b32 v20, v32 offset:512
''')
p(f'''
s_lshl_b32 s12, s11, 2
s_add_u32 s12, s12, {FL_AP}
v_mov_b32 v253, s12
v_mov_b32 v254, {FL_AP}
v_mov_b32 v2, 1
s_waitcnt lgkmcnt(0)
ds_write_b32 v253, v2
''')
get_nonce(22)
poll_tag(ld_stats, [42, 46], first_tag='st')
lds_wait(254, 1, 2)
p('ds_read_b32 v25, v21\nds_read_b32 v29, v21 offset:256\nds_read_b32 v33, v21 offset:512')
p('s_waitcnt lgkmcnt(0)')
stamp('stats')
p('v_cmp_gt_u32 vcc, 32, v0')
for j in range(3):
    b = 64 + 4 * j; c = 24 + 4 * j
    p(f'''
    v_add_f32 v{c}, v{c}, v{c+1}
    v_cvt_pk_bf16_f32 v{c+1}, 0, v{c}
    v_sub_f32 v{c+2}, v{c}, v{c+1}
    v_cvt_pk_bf16_f32 v{c+3}, 0, v{c+2}
    v_sub_f32 v{c+2}, v{c+2}, v{c+3}
    v_cvt_pk_bf16_f32 v{b}, v{c+1}, v{c+3}
    v_cvt_pk_bf16_f32 v{b+1}, v{c+2}, 0
    v_mov_b32 v{b+2}, 0
    v_mov_b32 v{b+3}, 0
    ''')
for tbk in range(2):
    b = 76 + 4 * tbk; st = 40 + 4 * tbk; R = 48 + 4 * tbk
    p(f'''
    v_cndmask_b32 v{st}, 0, v{st}, vcc
    v_rcp_f32 v{R}, v{st+1}
    v_cvt_pk_bf16_f32 v{b}, v{st}, v{st}
    v_cvt_pk_bf16_f32 v{b+1}, v{st}, 0
    v_mov_b32 v{b+2}, 0
    v_mov_b32 v{b+3}, 0
    v_mov_b32 v{R+1}, v{R}
    v_mov_b32 v{R+2}, v{st+1}
    v_mov_b32 v{R+3}, v{st+1}
    ''')
for j in range(3):
    for tbk in range(2):
        a = acc(tbk, j)
        p(f'v_mfma_f32_32x32x16_bf16 v[{a}:{a+15}], v[{64+4*j}:{67+4*j}], v[{76+4*tbk}:{79+4*tbk}], v[{a}:{a+15}]')
K1 = 2.0 * math.sqrt(2.0 / math.pi) * math.log2(math.e)
K2 = K1 * 0.044715
p(f'''
s_lshl_b32 s12, s6, 2
s_lshl_b32 s13, s0, 1
s_add_u32 s12, s12, s13
s_mul_i32 s12, s12, {H_TB}
''')
srd_off(60, 40, 41, 's12', H_TB)
p(f's_add_u32 s12, s12, {H_TB}')
srd_off(64, 40, 41, 's12', H_TB)
p(f'''
s_lshl_b32 s13, s7, 1
s_add_u32 s13, s13, s1
s_mul_i32 s74, s13, 3072
s_lshl_b32 s12, s6, 1
s_add_u32 s12, s12, s0
s_mul_i32 s12, s12, 768
s_lshl_b32 s13, s13, 3
s_add_u32 s12, s12, s13
s_add_u32 s75, s12, {WS_FH}
s_mov_b32 s68, {f32(-K2)}
s_mov_b32 s69, {f32(-K2)}
v_mov_b32 v56, {f32(-K1)}
v_mov_b32 v57, {f32(-K1)}
v_mov_b32 v58, s76
v_mov_b32 v59, s77
v_mov_b32 v60, 0
''')
def h_flag(j):
    p.wait_vm(f'hst{j}')
    p('s_mov_b64 exec, 1')
    p(f'buffer_store_dwordx2 v[58:59], v60, s[56:59], s75 offen offset:{256*j} sc1')
    p('s_mov_b64 exec, -1')
for j in range(3):
    for tbk in range(2):
        a = acc(tbk, j); R = 48 + 4 * tbk
        T = 84 + 20 * tbk
        for q in range(4):
            p(f'v_pk_mul_f32 v[{a+2*q}:{a+2*q+1}], v[{a+2*q}:{a+2*q+1}], v[{R}:{R+1}]')
        for q in range(4):
            p(f'v_pk_mul_f32 v[{T+2*q}:{T+2*q+1}], v[{a+2*q}:{a+2*q+1}], v[{a+2*q}:{a+2*q+1}]')
        for q in range(4):
            p(f'v_pk_fma_f32 v[{T+2*q}:{T+2*q+1}], v[{T+2*q}:{T+2*q+1}], s[68:69], v[56:57]')
        for q in range(4):
            p(f'v_pk_mul_f32 v[{T+2*q}:{T+2*q+1}], v[{T+2*q}:{T+2*q+1}], v[{a+2*q}:{a+2*q+1}]')
        for q in range(8):
            p(f'v_exp_f32 v{T+q}, v{T+q}')
            if q & 1:
                h = q >> 1
                p(f'v_pk_mul_f32 v[{a+2*h}:{a+2*h+1}], v[{a+2*h}:{a+2*h+1}], v[{a+8+2*h}:{a+9+2*h}]')
        for q in range(4):
            p(f'v_pk_fma_f32 v[{T+2*q}:{T+2*q+1}], v[{T+2*q}:{T+2*q+1}], v[{R+2}:{R+3}], v[{R+2}:{R+3}]')
        for q in range(8):
            p(f'v_rcp_f32 v{T+q}, v{T+q}')
        for q in range(4):
            p(f'v_pk_mul_f32 v[{T+2*q}:{T+2*q+1}], v[{T+2*q}:{T+2*q+1}], v[{a+2*q}:{a+2*q+1}]')
        for q in range(4):
            p(f'v_cvt_pk_bf16_f32 v{T+8+q}, v{T+2*q}, v{T+2*q+1}')
        p(f'buffer_store_dwordx4 v[{T+8}:{T+11}], v7, s[{60+4*tbk}:{63+4*tbk}], s74 offen offset:{1024*j} sc1', tag=f'hst{j}')
    if j == 1:
        h_flag(0)
        stamp('hfl0')
    if j == 2:
        stamp('gelu')
p(f'''
v_lshrrev_b32 v20, 5, v0
v_bfe_u32 v21, v0, 2, 2
v_lshl_add_u32 v20, v20, 2, v21
v_lshlrev_b32 v20, 7, v20
v_bfe_u32 v22, v0, 4, 1
v_lshl_add_u32 v20, v22, 5, v20
v_and_b32 v22, 3, v0
v_lshl_add_u32 v20, v22, 3, v20
v_bfe_u32 v22, v0, 3, 1
v_lshl_add_u32 v21, v22, 6, v20
v_xor_b32 v22, 64, v21
s_mul_i32 s12, s0, 20480
v_add_u32 v250, s12, v21
v_add_u32 v251, s12, v22
v_add_u32 v248, {2*SLOT}, v250
v_add_u32 v249, {2*SLOT}, v251
v_mov_b32 v252, {FL_WD}
s_lshl_b32 s12, s0, 3
s_add_u32 s12, s12, {FL_AP}
v_mov_b32 v254, s12
v_lshlrev_b32 v246, 3, v0
''')
h_flag(1)
stamp('hfl1')
lds_wait(252, 2, 2)
stamp('wd2')
PRE, HW, NW = 64, 184, 15
def AF(st): return PRE + 8 * st if st < 15 else 8 + 8 * (st % 3)
def g2_reads(st):
    r, off = wd_pos(st); b = AF(st)
    return [lambda dt=dt, h=h: p(f'ds_read_b64_tr_b16 v[{b+4*dt+2*h}:{b+4*dt+2*h+1}], v{248+2*r+dt} offset:{off + 1024*h}', tag=f'a{st}')
            for dt in range(2) for h in range(2)]
h_flag(2)
stamp('hfl2')
for st in range(15):
    run(g2_reads(st))
p(f'''
s_lshl_b32 s12, s8, 1
s_add_u32 s12, s12, s1
s_mul_i32 s12, s12, {H_TB}
''')
srd_off(60, 40, 41, 's12', H_TB)
p(f'''
s_mul_i32 s12, s8, 768
s_mul_i32 s13, s0, 120
s_add_u32 s12, s12, s13
s_add_u32 s75, s12, {WS_FH}
s_mul_i32 s74, s0, {NSTEP*1024}
v_mov_b32 v2, 2
s_waitcnt lgkmcnt(0)
ds_write_b32 v253, v2
''')
stamp('pre')
def ld_fh(stage, tag=None):
    p('s_mov_b64 exec, 0x7fff')
    p(f'buffer_load_dwordx2 v[244:245], v246, s[56:59], s75 offen offset:{256*stage} sc1', tag)
    p('s_mov_b64 exec, -1')
poll_tag(lambda: ld_fh(0), [244], mask=('0x7fff', '0'))
stamp('fh0')
def h_load(st):
    b = HW + 4 * (st % NW)
    p(f's_add_u32 s12, s74, {step_unit(st)*1024}')
    p(f'buffer_load_dwordx4 v[{b}:{b+3}], v7, s[60:63], s12 offen sc1', tag=f'h{st}')
    if st in (15 - 8, 30 - 8):
        ld_fh(1 if st < 15 else 2, 'fh')
for st in range(LA):
    h_load(st)
for st in range(NSTEP):
    nl = st + LA
    if nl == 15:
        poll_tag(lambda: ld_fh(1), [244], mask=('0x7fff', '0'), first_tag='fh')
        stamp('fh1')
    if nl == 30:
        poll_tag(lambda: ld_fh(2), [244], mask=('0x7fff', '0'), first_tag='fh')
        stamp('fh2')
    if nl < NSTEP:
        h_load(nl)
    nxt = st + 2
    if nxt == 20 or nxt == 30:
        lds_wait(252, 3 if nxt == 20 else 4, 2)
    if st == 30:
        p('v_mov_b32 v2, 3\nds_write_b32 v253, v2')
    r = g2_reads(nxt) if 15 <= nxt < NSTEP else []
    p.wait_vm(f'h{st}')
    p.wait_lg(f'a{st}')
    if st in (0, 15, 30):
        stamp(f'st{st}')
    b = AF(st); hb = HW + 4 * (st % NW)
    for dt in range(2):
        cin = '0' if st == 0 else f'v[{32+16*dt}:{47+16*dt}]'
        p(f'v_mfma_f32_32x32x16_bf16 v[{32+16*dt}:{47+16*dt}], v[{b+4*dt}:{b+4*dt+3}], v[{hb}:{hb+3}], {cin}')
        for x in r[2 * dt:2 * dt + 2]:
            x()
stamp('g2end')
p(f'''
v_and_b32 v4, 31, v0
v_lshrrev_b32 v5, 5, v0
v_and_b32 v6, 7, v0
v_xor_b32 v5, v5, v6
s_mul_i32 s12, s0, 20480
s_lshl_b32 s13, s1, 13
s_add_u32 s12, s12, s13
s_add_u32 s12, s12, {SLOT}
v_lshl_add_u32 v4, v4, 8, s12
''')
for q in range(4):
    p(f'v_xor_b32 v6, {2*q}, v5\nv_lshl_add_u32 v{8+q}, v6, 4, v4')
lds_wait(254, 3, 12, two=True)
for dt in range(2):
    for q in range(4):
        p(f'ds_write_b128 v{8+q}, v[{32+16*dt+4*q}:{35+16*dt+4*q}] offset:{128*dt}')
p('v_mov_b32 v4, 4')
p('s_waitcnt lgkmcnt(0)')
p('ds_write_b32 v253, v4')
stamp('done')
if PROF:
    p('s_waitcnt lgkmcnt(0)')
p('s_branch L_fin')

p.raw('.p2align 3')
p.label('L_groupB')
p.reset_counters(); p.reset_hist()
grp[0] = 'B'
if PRIOB:
    p(f's_setprio {PRIOB}')
kvf = ' nt' if NT_KV else ''
srd(60, 18, 19, 0x200000)
srd(64, 20, 21, 0x200000)
srd(68, 16, 17, 0x200000)
p(f'''
v_lshrrev_b32 v10, 5, v0
v_and_b32 v11, 31, v0
s_lshl_b32 s12, s8, 16
s_lshl_b32 s13, s11, 14
s_add_u32 s12, s12, s13
s_lshl_b32 s13, s9, 7
s_add_u32 s12, s12, s13
v_lshlrev_b32 v12, 13, v10
v_lshl_add_u32 v12, v11, 2, v12
v_add_u32 v12, s12, v12
v_subrev_u32 v13, 3072, v12
v_add_u32 v14, 1024, v12
v_add_u32 v15, 5120, v12
v_add_u32 v16, 4096, v12
''')
KR, VR = 32, 44
for i in range(11):
    if i < 3:
        p(f'v_add_u32 v17, {1024*i}, v13')
        p(f'buffer_load_dword v{KR+i}, v17, s[60:63], 0 offen{kvf}', tag='kv')
    elif i == 3:
        p(f'buffer_load_dword v{KR+i}, v12, s[60:63], 0 offen{kvf}', tag='kv')
    else:
        base, off = (14, i - 4) if i < 8 else (15, i - 8)
        p(f'buffer_load_dword v{KR+i}, v{base}, s[60:63], 0 offen offset:{1024*off}{kvf}', tag='kv')
for i in range(8):
    p(f'buffer_load_dword v{VR+i}, v{12 if i < 4 else 16}, s[64:67], 0 offen offset:{1024*(i%4)}{kvf}', tag='kv')
p(f'''
s_lshl_b32 s12, s9, 9
v_lshl_add_u32 v17, v11, 4, s12
global_load_dwordx4 v[52:55], v17, s[22:23]
''', tag='kv')
p(f'''
s_lshl_b32 s12, s8, 16
s_lshl_b32 s13, s9, 13
s_add_u32 s12, s12, s13
s_lshl_b32 s13, s11, 11
s_add_u32 s12, s12, s13
buffer_load_dwordx4 v[60:63], v7, s[68:71], s12 offen
buffer_load_dwordx4 v[64:67], v7, s[68:71], s12 offen offset:1024
''', tag='strow')
LP = newlabel('pf')
p('s_cmp_lg_u32 s3, 7')
p(f's_cbranch_scc1 {LP}')
p('s_mov_b32 s72, s14\ns_mov_b32 s73, s15\ns_mov_b32 s74, L_code_end-L_code_start\ns_mov_b32 s75, 0x00020000')
p('s_lshl_b32 s12, s5, 10')
p.raw('    buffer_load_dwordx4 v[248:251], v7, s[72:75], s12 offen')
p.label(LP)
stamp('issued')
p(f'''
s_mul_i32 s43, s0, {CH_SZ}
s_add_u32 s43, s43, {CONV}
v_mov_b32 v20, 0
v_mov_b32 v21, 0
v_mov_b32 v22, 0
v_mov_b32 v23, 0
s_mul_i32 s12, s1, {HC1}
s_add_u32 s12, s12, s43
v_lshl_add_u32 v17, v0, 2, s12
s_lshr_b32 s12, 0xffff, s1
s_mov_b32 s13, 0
s_mov_b64 exec, s[12:13]
ds_write_b32 v17, v20
s_mov_b64 exec, -1
s_add_u32 s12, s43, {UIMG}
v_add_u32 v17, s12, v7
ds_write_b128 v17, v[20:23]
''')
def himg():
    p(f"""
    s_lshl_b32 s12, s2, 1
    s_add_u32 s12, s12, s0
    s_lshl_b32 s13, s12, 1
    v_mov_b32 v8, s13
    s_lshl_b32 s12, s12, 12
    """)
    srd_off(28, 24, 25, 's12', 4096)
    p(f"""
    s_mul_i32 s12, s1, {HC1-4}
    s_add_u32 s12, s12, s43
    s_add_u32 s12, s12, 64
    v_mov_b32 v9, s12
    s_mov_b32 m0, s12
    """)
    for i in range(4):
        p(f'buffer_load_dwordx4 v7, s[28:31], 0 offen offset:{1024*i}{kvf} lds', tag='himg')
    p('global_load_ushort v8, v8, s[26:27]', tag='himg')
if HIMG0:
    himg()
UT = CONV + UIMG + 1024
p(f'''
s_lshl_b32 s12, s11, 1
s_xor_b32 s12, s12, 7
v_xor_b32 v17, s12, v10
v_and_b32 v18, 7, v11
v_xor_b32 v17, v17, v18
v_lshlrev_b32 v17, 4, v17
v_lshl_add_u32 v17, v11, 8, v17
v_add_u32 v17, {UT}, v17
''')
KU, TAP, KV = 70, 96, 108
p.wait_vm('kv')
stamp('kv')
for j in range(4):
    src0 = 52 + (j >> 1); src1 = 54 + (j >> 1)
    if j & 1:
        p(f'v_and_b32 v{TAP+2*j}, 0xffff0000, v{src0}\nv_and_b32 v{TAP+2*j+1}, 0xffff0000, v{src1}')
    else:
        p(f'v_lshlrev_b32 v{TAP+2*j}, 16, v{src0}\nv_lshlrev_b32 v{TAP+2*j+1}, 16, v{src1}')
for i in range(11):
    p(f'v_lshlrev_b32 v{KU+2*i}, 16, v{KR+i}\nv_and_b32 v{KU+2*i+1}, 0xffff0000, v{KR+i}')
for t in range(8):
    p(f'v_pk_mul_f32 v[{KV+2*t}:{KV+2*t+1}], v[{KU+2*t}:{KU+2*t+1}], v[{TAP+6}:{TAP+7}]')
for j in (2, 1, 0):
    for t in range(8):
        p(f'v_pk_fma_f32 v[{KV+2*t}:{KV+2*t+1}], v[{KU+2*(t+3-j)}:{KU+2*(t+3-j)+1}], v[{TAP+2*j}:{TAP+2*j+1}], v[{KV+2*t}:{KV+2*t+1}]')
for t in range(8):
    p(f'v_lshlrev_b32 v{KU+2*t}, 16, v{VR+t}\nv_and_b32 v{KU+2*t+1}, 0xffff0000, v{VR+t}')
for t in range(8):
    p(f'v_pk_mul_f32 v[{KV+2*t}:{KV+2*t+1}], v[{KV+2*t}:{KV+2*t+1}], v[{KU+2*t}:{KU+2*t+1}]')
for c in range(2):
    for i in range(4):
        p(f'v_cvt_pk_bf16_f32 v{136+4*c+i}, v{KV+2*(7-2*i)+c}, v{KV+2*(6-2*i)+c}')
p('ds_write_b128 v17, v[136:139]')
p('ds_write_b128 v17, v[140:143] offset:128')
p('v_mov_b32 v56, 0')
p('global_load_dwordx2 v[56:57], v56, s[38:39] sc1', tag='nonce')
p.wait_vm('strow')
XU = 70
for r in range(2):
    for i in range(4):
        p(f'v_lshlrev_b32 v{XU+8*r+2*i}, 16, v{60+4*r+i}\nv_and_b32 v{XU+8*r+2*i+1}, 0xffff0000, v{60+4*r+i}')
def wave_sum2(a, b):
    for ctl in ('row_shr:1 row_mask:0xf bank_mask:0xf', 'row_shr:2 row_mask:0xf bank_mask:0xf', 'row_shr:4 row_mask:0xf bank_mask:0xf',
                'row_shr:8 row_mask:0xf bank_mask:0xf', 'row_bcast:15 row_mask:0xa bank_mask:0xf', 'row_bcast:31 row_mask:0xc bank_mask:0xf'):
        p(f'v_add_f32_dpp v{a}, v{a}, v{a} {ctl}')
        p(f'v_add_f32_dpp v{b}, v{b}, v{b} {ctl}')
for r in range(2):
    p(f'v_pk_add_f32 v[{88+2*r}:{89+2*r}], v[{XU+8*r}:{XU+8*r+1}], v[{XU+8*r+2}:{XU+8*r+3}]')
    p(f'v_pk_add_f32 v[{92+2*r}:{93+2*r}], v[{XU+8*r+4}:{XU+8*r+5}], v[{XU+8*r+6}:{XU+8*r+7}]')
for r in range(2):
    p(f'v_pk_add_f32 v[{88+2*r}:{89+2*r}], v[{88+2*r}:{89+2*r}], v[{92+2*r}:{93+2*r}]')
for r in range(2):
    p(f'v_add_f32 v{88+2*r}, v{88+2*r}, v{89+2*r}')
wave_sum2(88, 90)
p('v_readlane_b32 s12, v88, 63\nv_readlane_b32 s13, v90, 63')
p(f'v_mov_b32 v92, {f32(1.0/512)}')
p('v_mul_f32 v94, s12, v92\nv_mul_f32 v95, s13, v92')
for i in range(8):
    for r in range(2):
        p(f'v_sub_f32 v{XU+8*r+i}, v{XU+8*r+i}, v{94+r}')
for i in range(8):
    for r in range(2):
        if i == 0:
            p(f'v_mul_f32 v{88+2*r}, v{XU+8*r}, v{XU+8*r}')
        else:
            p(f'v_fmac_f32 v{88+2*r}, v{XU+8*r+i}, v{XU+8*r+i}')
wave_sum2(88, 90)
p('v_readlane_b32 s12, v88, 63\nv_readlane_b32 s13, v90, 63')
p(f'''
v_cmp_eq_u32 vcc, 0, v0
v_mov_b32 v88, s13
v_mov_b32 v89, s12
v_cndmask_b32 v88, v88, v89, vcc
v_cndmask_b32 v94, v95, v94, vcc
v_mul_f32 v88, v88, v92
v_cvt_pk_bf16_f32 v88, 0, v88
v_add_f32 v88, {f32(1e-5)}, v88
v_cvt_pk_bf16_f32 v88, 0, v88
v_sqrt_f32 v88, v88
v_cvt_pk_bf16_f32 v94, 0, v94
v_cvt_pk_bf16_f32 v97, 0, v88
v_xor_b32 v96, 0x80000000, v94
''')
p(f'''
s_lshl_b32 s12, s11, 11
s_add_u32 s12, s12, {UT}
v_add_u32 v16, s12, v7
v_lshrrev_b32 v18, 3, v0
v_lshrrev_b32 v19, 4, v0
v_and_b32 v17, 7, v0
v_xor_b32 v19, v17, v19
v_mul_u32_u24 v18, {UR_P}, v18
v_lshl_add_u32 v20, v19, 4, v18
v_xor_b32 v19, 4, v19
v_lshl_add_u32 v21, v19, 4, v18
s_lshl_b32 s12, s9, 6
s_lshl_b32 s13, s11, 4
s_add_u32 s12, s12, s13
s_mul_i32 s12, s12, {UR_P}
s_add_u32 s72, s12, {WS_UR}
s_sub_u32 s13, 31, s8
s_lshl_b32 s13, s13, 7
s_add_u32 s60, s72, s13
s_add_u32 s61, s60, {8*UR_P}
s_cmp_eq_u32 s8, 0
s_movk_i32 s12, 4096
s_cselect_b32 s13, s12, {WS_SIZE}
v_mul_u32_u24 v18, {UR_P}, v0
v_add_u32 v18, s13, v18
v_mov_b32 v19, 0
''')
stamp('pdone')
p('s_waitcnt lgkmcnt(0)')
p('s_barrier')
p('ds_read_b128 v[136:139], v16\nds_read_b128 v[140:143], v16 offset:1024')
p('s_waitcnt lgkmcnt(0)')
p('buffer_store_dwordx4 v[136:139], v20, s[56:59], s60 offen sc1', tag='ust')
p('buffer_store_dwordx4 v[140:143], v21, s[56:59], s61 offen sc1', tag='ust')
p('s_mov_b64 exec, 0xffff')
p('buffer_store_dword v19, v18, s[56:59], s72 offen sc1', tag='ust')
p('s_mov_b64 exec, -1')
get_nonce(56)
stamp('nonce')
p(f'''
v_mov_b32 v98, s76
v_mov_b32 v99, s77
s_lshl_b32 s12, s8, 10
s_lshl_b32 s13, s9, 7
s_add_u32 s12, s12, s13
s_lshl_b32 s13, s11, 5
s_add_u32 s12, s12, s13
s_add_u32 s12, s12, {WS_ST}
s_mov_b64 exec, 3
''')
p('buffer_store_dwordx4 v[96:99], v7, s[56:59], s12 offen sc1', tag='stst')
p('s_mov_b64 exec, -1')
run(g1_dma(2))
stamp('iss2')
p(f'''
s_lshl_b32 s12, s9, 2
s_add_u32 s12, s12, s11
s_lshl_b32 s12, s12, 5
s_add_u32 s12, s12, s8
s_lshl_b32 s12, s12, 3
s_add_u32 s12, s12, {WS_FU}
v_mov_b32 v17, 0
''')
p.wait_vm('ust')
p('s_mov_b64 exec, 1')
p('buffer_store_dwordx2 v[98:99], v17, s[56:59], s12 offen sc1', tag='fu')
p('s_mov_b64 exec, -1')
stamp('fu')
p('s_barrier')
run(g1_dma(3))
srd(20, 34, 35, 1376 * 1024)
p(f"""
s_lshl_b32 s12, s2, 1
s_add_u32 s12, s12, s0
s_mul_i32 s12, s12, {UR_P}
s_add_u32 s12, s12, {WS_UR}
""")
srd_off(60, 40, 41, 's12', 4100)
p(f"""
v_lshrrev_b32 v12, 3, v0
v_and_b32 v13, 7, v0
v_bfe_u32 v14, v0, 4, 1
v_lshlrev_b32 v14, 2, v14
v_xor_b32 v13, v13, v14
v_lshlrev_b32 v13, 4, v13
v_lshl_add_u32 v12, v12, 10, v13
s_mul_i32 s64, s0, {NSTEP*16384}
s_lshl_b32 s12, s1, 13
s_add_u32 s64, s64, s12
s_lshl_b32 s12, s9, 7
s_add_u32 s64, s64, s12
s_mul_i32 s65, s0, 20480
s_lshl_b32 s12, s1, 10
s_add_u32 s65, s65, s12
v_lshrrev_b32 v18, 3, v0
v_and_b32 v19, 7, v0
v_lshlrev_b32 v20, 10, v18
v_lshl_add_u32 v20, v19, 4, v20
s_lshl_b32 s12, s8, 16
s_lshl_b32 s13, s11, 14
s_add_u32 s12, s12, s13
s_lshl_b32 s13, s9, 7
s_add_u32 s66, s12, s13
s_add_u32 s67, s66, 8192
s_lshl_b32 s12, s8, 10
s_lshl_b32 s13, s11, 8
s_add_u32 s12, s12, s13
s_add_u32 s18, s12, {WS_ST}
v_lshlrev_b32 v21, 4, v18
s_lshr_b32 s12, s2, 3
s_lshl_b32 s12, s12, 8
s_add_u32 s19, s12, {WS_FU}
v_and_b32 v215, 31, v0
v_lshlrev_b32 v215, 3, v215
s_lshr_b32 s12, s5, 2
s_lshl_b32 s12, s12, 2
s_add_u32 s12, s12, s11
s_mul_i32 s12, s12, {43*1024}
s_lshl_b32 s13, s9, 7
s_add_u32 s73, s12, s13
v_lshlrev_b32 v249, 10, v0
""")
p(f"""
v_and_b32 v214, 1, v0
v_bfe_u32 v13, v0, 1, 3
v_lshrrev_b32 v14, 4, v0
v_lshlrev_b32 v214, 1, v214
v_lshl_add_u32 v214, v13, 6, v214
v_lshl_add_u32 v214, v14, 4, v214
v_sub_u32 v214, {4082 - 3*512}, v214
s_lshl_b32 s12, s1, 11
v_subrev_u32 v214, s12, v214
s_lshl_b32 s12, s1, 12
s_add_u32 s12, s12, s43
s_add_u32 s72, s12, {UIMG + 1024}
""")
p(f"""
v_and_b32 v210, 15, v0
v_lshrrev_b32 v211, 4, v0
v_and_b32 v212, 1, v0
v_lshlrev_b32 v13, 2, v210
v_lshlrev_b32 v213, 4, v211
v_sub_u32 v13, v13, v213
v_xor_b32 v213, 1, v212
v_mul_u32_u24 v213, {HC1-4}, v213
s_lshl_b32 s12, s1, 8
s_add_u32 s12, s12, s43
s_add_u32 s12, s12, 52
v_add3_u32 v13, v13, v213, s12
v_lshrrev_b32 v210, 1, v210
v_lshlrev_b32 v211, 8, v211
v_lshl_add_u32 v211, v212, 4, v211
s_add_u32 s12, s43, {UIMG}
v_add_u32 v211, s12, v211
s_lshl_b32 s12, s1, 2
s_sub_u32 s12, 8, s12
v_add_u32 v210, s12, v210
""")
for i in range(4):
    p(f"""
    v_subrev_u32 v212, {i}, v210
    v_lshrrev_b32 v213, 3, v212
    v_and_b32 v212, 7, v212
    v_lshl_add_u32 v213, v213, 10, v211
    v_lshl_add_u32 v{14+i}, v212, 5, v213
    """)
p(f"""
s_lshl_b32 s12, s11, 2
s_add_u32 s13, s12, {FL_WD}
v_mov_b32 v22, s13
s_add_u32 s13, s12, {FL_BS}
v_mov_b32 v23, s13
v_mov_b32 v11, {FL_BS}
v_mov_b32 v10, {FL_AP}
""")
p.wait_vm('c2')
p('s_barrier')
for c in range(4, 8):
    run(g1_dma(c))
    p.wait_vm(f'c{c-1}')
    p('s_barrier')
stamp('bar6')
def ld_st2(tag=None):
    p('buffer_load_dwordx4 v[200:203], v21, s[56:59], s18 offen sc1', tag)
    p('buffer_load_dwordx4 v[204:207], v21, s[56:59], s18 offen offset:128 sc1', tag)
    p('buffer_load_dwordx2 v[208:209], v215, s[56:59], s19 offen sc1', tag)
ld_st2('fu1')
p("""
buffer_load_dwordx4 v[24:27], v20, s[68:71], s66 offen
buffer_load_dwordx4 v[28:31], v20, s[68:71], s67 offen
""", tag='xt')
wdf = ' nt' if NT_WD else ''
p(f"""
s_mov_b32 exec_lo, -1
s_movk_i32 exec_hi, 0x7ff
buffer_load_dword v248, v249, s[20:23], s73 offen{wdf}
s_mov_b64 exec, -1
""", tag='wdpf')
if not HIMG0:
    himg()
p.wait_vm('c7')
p('s_barrier')
stamp('bar7')
poll_tag(ld_st2, [202, 206, 208], first_tag='fu1')
stamp('fuok')
for i in range(4):
    p(f's_add_u32 m0, s72, {1024*i}')
    p(f's_mov_b32 s13, {512*(3-i)}')
    p('buffer_load_dwordx4 v214, s[60:63], s13 offen sc1 lds', tag='uimg')
def wd_dma(steps, tag):
    t = []
    for st in steps:
        def f(st=st):
            r, off = wd_pos(st)
            p(f's_add_u32 s13, s64, {step_unit(st)*16384}')
            p(f's_add_u32 m0, s65, {WD_BASE[r] + off}')
            if len(p.vm) > THR:
                p(f's_waitcnt vmcnt({THR})')
            p(f'buffer_load_dwordx4 v12, s[20:23], s13 offen lds', tag=tag)
        t.append(f)
    return t
p.wait_vm('xt')
for j in range(2):
    st = 200 + 4 * j
    p(f'v_rcp_f32 v{st+2}, v{st+1}')
    p(f'v_mul_f32 v{st+3}, v{st}, v{st+2}')
    for i in range(4):
        x0 = 216 + 8 * j + 2 * i; n0 = 232 + 8 * j + 2 * i
        p(f'v_lshlrev_b32 v{x0}, 16, v{24+4*j+i}\nv_and_b32 v{x0+1}, 0xffff0000, v{24+4*j+i}')
        p(f'v_fma_f32 v{n0}, v{x0}, v{st+2}, v{st+3}\nv_fma_f32 v{n0+1}, v{x0+1}, v{st+2}, v{st+3}')
p.wait_vm('wdpf')
stamp('wdpf')
run(wd_dma(list(range(0, 20)), 'wd2'))
stamp('isswd')
p.wait_vm('uimg')
p('ds_read_u16 v24, v9')
p('s_waitcnt lgkmcnt(0)')
p("""
v_lshlrev_b32 v24, 16, v24
v_lshlrev_b32 v8, 16, v8
v_add_f32 v8, v8, v24
v_cvt_pk_bf16_f32 v8, v8, 0
ds_write_b16 v9, v8
v_mov_b32 v8, 1
s_waitcnt lgkmcnt(0)
ds_write_b32 v23, v8
""")
lds_wait(10, 1, 64)
w3 = wd_dma(list(range(20, 30)), 'wd3')
run(w3[:THR])
p.wait_vm('wd2')
p('v_mov_b32 v8, 2\nds_write_b32 v22, v8')
stamp('wd2')
run(w3[THR:])
p.wait_vm('wd3')
p('v_mov_b32 v8, 3\nds_write_b32 v22, v8')
stamp('wd3')
lds_wait(11, 1, 64)
CA = 32
def CS(i): return 64 + 64 * (i & 1)
def cv_reads(i):
    b = CS(i); t = []
    for a in range(8):
        t.append(lambda a=a: p(f'ds_read_b128 v[{b+32+4*a}:{b+35+4*a}], v{14+i} offset:{1024*a}', tag=f'cv{i}_{a}'))
        for h in range(2):
            t.append(lambda a=a, h=h: p(f'ds_read_b64 v[{b+4*a+2*h}:{b+4*a+2*h+1}], v13 offset:{64*i + 512*a + 8*h}', tag=f'cv{i}_{a}'))
    return t
def cv_mfma(i):
    b = CS(i); t = []
    for m in range(8):
        pairs = [(m, bb) for bb in range(0, m + 1) if m + bb <= 7] + [(aa, m) for aa in range(0, m) if aa + m <= 7]
        for n, (a, bb) in enumerate(pairs):
            cb = a + bb
            first = (i == 0 and cb not in seen)
            seen.add(cb)
            cin = '0' if first else f'v[{CA+4*cb}:{CA+4*cb+3}]'
            def f(a=a, bb=bb, cb=cb, cin=cin, m=m, n=n):
                if n == 0:
                    p.wait_lg(f'cv{i}_{m}')
                p(f'v_mfma_f32_16x16x32_bf16 v[{CA+4*cb}:{CA+4*cb+3}], v[{b+4*a}:{b+4*a+3}], v[{b+32+4*bb}:{b+35+4*bb}], {cin}')
            t.append(f)
    return t
seen = set()
run(cv_reads(0))
lds_wait(10, 2, 192)
stamp('cvstart')
w4 = wd_dma(list(range(30, 45)), 'wd4')
for i in range(4):
    m = cv_mfma(i)
    r = cv_reads(i + 1) if i < 3 else []
    m = interleave(m, r, start=0, every=1)
    if i < 2:
        m = interleave(m, w4[8*i:8*i+8], start=0, every=7)
    run(m)
    if i == 2:
        p.wait_vm('wd4')
        p('v_mov_b32 v8, 4\nds_write_b32 v22, v8')
        stamp('wd4')
stamp('cvend')
p('v_mov_b32 v8, 2')
p('s_waitcnt lgkmcnt(0)')
p('ds_write_b32 v23, v8')
p(f'''
s_lshl_b32 s12, s11, 13
s_add_u32 s12, s12, {CONV}
v_add_u32 v14, s12, v7
s_lshl_b32 s12, s11, 11
s_add_u32 s12, s12, {CONV}
v_add_u32 v15, s12, v7
''')
lds_wait(11, 2, 64)
for cb in range(8):
    p(f'ds_write_b128 v14, v[{CA+4*cb}:{CA+4*cb+3}] offset:{1024*cb}')
p('v_mov_b32 v8, 3')
p('s_waitcnt lgkmcnt(0)')
p('ds_write_b32 v23, v8')
p(f'''
v_and_b32 v16, 1, v0
v_cmp_eq_u32 vcc, 0, v16
v_bfe_u32 v17, v0, 1, 3
v_lshrrev_b32 v13, 4, v0
v_lshlrev_b32 v16, 4, v16
v_lshl_add_u32 v16, v17, 7, v16
v_lshl_add_u32 v16, v13, 5, v16
s_lshl_b32 s12, s2, 13
s_lshl_b32 s13, s11, 11
s_add_u32 s12, s12, s13
s_add_u32 s50, s12, {WS_Y}
''')
lds_wait(11, 3, 64)
for w in range(4):
    for e in range(2):
        p(f'ds_read_b128 v[{64+16*w+4*e}:{67+16*w+4*e}], v15 offset:{8192*w + 1024*e}')
p('''
v_mov_b32 v8, 4
s_waitcnt lgkmcnt(0)
ds_write_b32 v23, v8
''')
for e in range(2):
    for c in range(2):
        for h in range(4):
            a = 64 + 32 * c + 4 * e + h
            p(f'v_add_f32 v{a}, v{a}, v{a+16}')
    D = 128 + 8 * e
    for r in range(4):
        p(f'v_cvt_pk_bf16_f32 v{D+r}, v{64+4*e+r}, v{96+4*e+r}')
    p(f'v_cndmask_b32 v{D+4}, v{D}, v{D+2}, vcc\nv_cndmask_b32 v{D+5}, v{D+1}, v{D+3}, vcc')
    p(f'v_cndmask_b32 v{D+6}, v{D+2}, v{D}, vcc\nv_cndmask_b32 v{D+7}, v{D+3}, v{D+1}, vcc')
    p(f'v_mov_b32_dpp v{D}, v{D+4} quad_perm:[1,0,3,2] row_mask:0xf bank_mask:0xf')
    p(f'v_mov_b32_dpp v{D+1}, v{D+5} quad_perm:[1,0,3,2] row_mask:0xf bank_mask:0xf')
    O = 144 + 4 * e
    p(f'v_cndmask_b32 v{O}, v{D}, v{D+6}, vcc\nv_cndmask_b32 v{O+1}, v{D+6}, v{D}, vcc')
    p(f'v_cndmask_b32 v{O+2}, v{D+1}, v{D+7}, vcc\nv_cndmask_b32 v{O+3}, v{D+7}, v{D+1}, vcc')
    p(f'buffer_store_dwordx4 v[{O}:{O+3}], v16, s[56:59], s50 offen offset:{1024*e} sc1', tag='yst')
stamp('yst')
p(f'''
s_lshr_b32 s12, s2, 5
s_lshl_b32 s12, s12, 2
s_add_u32 s12, s12, s11
s_lshl_b32 s12, s12, 5
s_and_b32 s13, s2, 31
s_add_u32 s12, s12, s13
s_lshl_b32 s12, s12, 3
s_add_u32 s53, s12, {WS_FY}
v_mov_b32 v32, s76
v_mov_b32 v33, s77
v_mov_b32 v9, 0
s_lshl_b32 s12, s9, 2
s_lshr_b32 s13, s8, 3
s_add_u32 s12, s12, s13
s_lshl_b32 s12, s12, 8
s_add_u32 s50, s12, {WS_FY}
v_and_b32 v21, 31, v0
v_lshlrev_b32 v21, 3, v21
''')
p(f'''
v_lshrrev_b32 v48, 2, v0
v_and_b32 v49, 3, v0
v_bfe_u32 v50, v0, 4, 2
v_xor_b32 v49, v49, v50
v_lshlrev_b32 v49, 4, v49
v_lshl_add_u32 v48, v48, 13, v49
s_lshl_b32 s12, s9, 18
s_lshl_b32 s13, s8, 8
s_add_u32 s12, s12, s13
s_lshl_b32 s13, s11, 6
s_add_u32 s12, s12, s13
s_add_u32 s48, s12, {WS_Y}
s_add_u32 s49, s48, {16*8192}
s_lshl_b32 s43, s11, 11
s_add_u32 s43, s43, {YT}
v_lshrrev_b32 v49, 5, v0
v_and_b32 v50, 3, v0
v_xor_b32 v49, v49, v50
v_lshlrev_b32 v49, 4, v49
v_lshl_add_u32 v49, v19, 8, v49
v_bfe_u32 v50, v0, 3, 2
v_lshl_add_u32 v49, v50, 2, v49
v_add_u32 v49, s43, v49
v_xor_b32 v50, 32, v49
v_lshlrev_b32 v52, 1, v19
v_xor_b32 v52, v52, v18
v_lshlrev_b32 v52, 4, v52
v_lshl_add_u32 v52, v18, 8, v52
s_lshl_b32 s12, s11, 12
s_add_u32 s12, s12, {SLOT}
v_add_u32 v52, s12, v52
v_xor_b32 v53, 16, v52
''')
srd(60, 36, 37, 0x200000)
p.wait_vm('yst')
p('s_mov_b64 exec, 1')
p('buffer_store_dwordx2 v[32:33], v9, s[56:59], s53 offen sc1')
p('s_mov_b64 exec, -1')
stamp('fy')
lds_wait(11, 4, 64)
poll_tag(lambda: p('buffer_load_dwordx2 v[34:35], v21, s[56:59], s50 offen sc1'), [34])
stamp('fyok')
p(f'''
s_mov_b32 m0, s43
buffer_load_dwordx4 v48, s[56:59], s48 offen sc1 lds
s_add_u32 m0, s43, 1024
buffer_load_dwordx4 v48, s[56:59], s49 offen sc1 lds
''', tag='yt')
p.wait_vm('yt')
for j in range(2):
    for i in range(4):
        p(f'ds_read_b32 v{96+4*j+i}, v{49+j} offset:{64*i}')
p('s_waitcnt lgkmcnt(0)')
for j in range(2):
    for i in range(4):
        x0 = 216 + 8 * j + 2 * i; n0 = 232 + 8 * j + 2 * i; y = 96 + 4 * j + i
        p(f'''
        v_lshlrev_b32 v104, 16, v{y}
        v_and_b32 v105, 0xffff0000, v{y}
        v_fmac_f32 v{x0}, v104, v{n0}
        v_fmac_f32 v{x0+1}, v105, v{n0+1}
        ''')
stamp('base')
lds_wait(10, 4, 64)
stamp('part')
for j in range(2):
    for kh in range(2):
        for e in range(2):
            r = 108 + 16 * kh + 8 * j + 4 * e
            p(f'ds_read_b128 v[{r}:{r+3}], v{52+e} offset:{20480*kh + 2048*j}', tag=f'ps{j}')
for j in range(2):
    p.wait_lg(f'ps{j}')
    for i in range(4):
        a = 108 + 8 * j + 2 * i; x0 = 216 + 8 * j + 2 * i
        p(f'''
        v_pk_add_f32 v[{a}:{a+1}], v[{a}:{a+1}], v[{a+16}:{a+17}]
        v_pk_add_f32 v[{a}:{a+1}], v[{a}:{a+1}], v[{x0}:{x0+1}]
        v_cvt_pk_bf16_f32 v{64+4*j+i}, v{a}, v{a+1}
        ''')
    p(f'buffer_store_dwordx4 v[{64+4*j}:{67+4*j}], v20, s[60:63], s{66+j} offen')
stamp('done')
if PROF:
    p('s_waitcnt lgkmcnt(0)')

p.label('L_fin')
if PROF:
    p('s_memrealtime s[12:13]')
    p('s_waitcnt lgkmcnt(0)')
    p('v_writelane_b32 v255, s12, 63')
    p(f's_lshl_b32 s42, s2, 3\ns_add_u32 s42, s42, s3\ns_lshl_b32 s42, s42, 8\ns_add_u32 s42, s42, {WS_PROF}')
    p('v_lshlrev_b32 v1, 2, v0')
    p('buffer_store_dword v255, v1, s[56:59], s42 offen')
p.label('L_end')
p('s_endpgm')
p.raw('L_code_end:')
p.raw(f'''.section .rodata,"a"
.p2align 6
.amdhsa_kernel {KNAME}
  .amdhsa_next_free_vgpr 256
  .amdhsa_next_free_sgpr 102
  .amdhsa_accum_offset 256
  .amdhsa_group_segment_fixed_size 0
  .amdhsa_kernarg_size 104
  .amdhsa_user_sgpr_count 2
  .amdhsa_user_sgpr_kernarg_segment_ptr 1
  .amdhsa_system_sgpr_workgroup_id_x 1
.end_amdhsa_kernel''')
open(OUT, 'w').write(open('hdr.txt').read() + p.text())
json.dump({'names': names, 'WS': dict(H_TB=H_TB, WS_UR=WS_UR, UR_P=UR_P, WS_Y=WS_Y, WS_ST=WS_ST, WS_PROF=WS_PROF, WS_SIZE=WS_SIZE)}, open(OUT + '.json', 'w'))
print('instructions:', p.nins, file=sys.stderr)
```

```python
import sys, math, struct, json
from asmlib import Prog, interleave

PROF = '--prof' in sys.argv
OUT = [a for a in sys.argv[1:] if not a.startswith('--')]
OUT = OUT[0] if OUT else 'k.s'
def opt(name, default):
    for a in sys.argv[1:]:
        if a.startswith('--' + name + '='):
            return int(a.split('=')[1])
    return default
NT_KV = opt('ntkv', 1)
NT_X = opt('ntx', 0)
NT_W = opt('ntw', 0)
NT_WD = opt('ntwd', 0)
ROT = opt('rot', 2)
LA = opt('la', 12)
PRIOB = opt('priob', 2)
THR = opt('thr', 10)
SLP = opt('slp', 4)
CVPRE = opt('cvpre', 0)
KVPOS = opt('kvpos', 0)
EXP = opt('exp', 0)
PF = ['sc1', 'sc0 sc1', 'sc1 nt', 'sc0 sc1 nt'][opt('pf', 0)]
SPIN = 1 << 20

KNAME = 'parallel_sum__ssm_conv_h3__geglu_ffn__prompt_kernel'

H_TB = 86 * 1024
WS_UR = 64 * H_TB
UR_P = 8192
WS_Y = WS_UR + 512 * UR_P
WS_ST = WS_Y + 256 * 8192
WS_FH = WS_ST + 2048 * 16
WS_FU = WS_FH + 64 * 128
WS_FY = WS_FU + 32 * 128
WS_PROF = WS_FY + 32 * 128
WS_SIZE = WS_PROF + 256 * 8 * 256

SLOT = 41024
G_OFF, U_OFF = 16384, 28704
CONV = 3 * SLOT
CH_SZ = 17664
HC1 = 4224
UIMG = 8448
CSUM = CONV + 2 * CH_SZ
STL = CSUM + 3072
FL = 163584
FL_WD, FL_AP, FL_BS = FL, FL + 16, FL + 32
YT = CONV
LDS_SIZE = 163840
NSTEP = 45

def wd_pos(step):
    if step >= 30:
        step -= 30
    if step < 10:
        return 0, step * 2048
    if step < 20:
        return 1, (step - 10) * 2048
    return 1, SLOT + (step - 20) * 2048
WD_BASE = [2 * SLOT, 0]
def step_unit(st):
    return 3 * (st % 15) + st // 15

def f32(x):
    return '0x%08x' % struct.unpack('<I', struct.pack('<f', x))[0]

p = Prog()
names = {'A': [], 'B': []}
grp = ['A']
pend = []
free_pairs = list(range(90, 102, 2))
def stamp(name):
    if not PROF:
        return
    if not free_pairs:
        p('s_waitcnt lgkmcnt(0)')
    sp = free_pairs.pop(0)
    names[grp[0]].append(name)
    pend.append((sp, len(names[grp[0]]) - 1))
    p(f's_memtime s[{sp}:{sp+1}]')
def flush_stamps():
    while pend:
        sp, idx = pend.pop(0)
        p(f'v_writelane_b32 v255, s{sp}, {idx}')
        free_pairs.append(sp)
p.after_lg0 = flush_stamps

def srd(d, lo, hi, nrec):
    p(f's_mov_b32 s{d}, s{lo}\ns_mov_b32 s{d+1}, s{hi}')
    p(f's_mov_b32 s{d+2}, {nrec}\ns_mov_b32 s{d+3}, 0x00020000')

def srd_off(d, lo, hi, off_sreg, nrec):
    p(f's_add_u32 s{d}, s{lo}, {off_sreg}\ns_addc_u32 s{d+1}, s{hi}, 0')
    p(f's_mov_b32 s{d+2}, {nrec}\ns_mov_b32 s{d+3}, 0x00020000')

lbl = [0]
def newlabel(s):
    lbl[0] += 1
    return f'L_{s}_{lbl[0]}'

def poll_tag(load, tagregs, mask=None, first_tag=None):
    L = newlabel('poll'); D = newlabel('pdone'); F = newlabel('pfirst')
    p(f's_mov_b32 s42, {SPIN}')
    if first_tag:
        p.wait_vm(first_tag)
        p(f's_branch {F}')
    saved = list(p.vm)
    p.label(L)
    load()
    p('s_waitcnt vmcnt(0)')
    if first_tag:
        p.vm = saved
        p.label(F)
    for n, t in enumerate(tagregs):
        p(f'v_cmp_ne_u64 vcc, s[76:77], v[{t}:{t+1}]')
        if n == 0:
            p('s_mov_b64 s[12:13], vcc')
        else:
            p('s_or_b64 s[12:13], s[12:13], vcc')
    if mask is not None:
        p(f's_and_b32 s12, s12, {mask[0]}\ns_and_b32 s13, s13, {mask[1]}')
    p('s_cmp_eq_u64 s[12:13], 0')
    p(f's_cbranch_scc1 {D}')
    p('s_sub_u32 s42, s42, 1\ns_cmp_lg_u32 s42, 0')
    if SLP:
        p(f's_sleep {SLP}')
    p(f's_cbranch_scc1 {L}')
    p.label(D)

def lds_wait(flag_addr_v, need, tmp, two=False, sleep=0):
    L = newlabel('lw'); D = newlabel('lwd')
    p(f's_mov_b32 s42, {SPIN}')
    p.label(L)
    if two:
        p(f'ds_read_b64 v[{tmp}:{tmp+1}], v{flag_addr_v}')
        p('s_waitcnt lgkmcnt(0)')
        p(f'v_min_u32 v{tmp}, v{tmp}, v{tmp+1}')
    else:
        p(f'ds_read_b128 v[{tmp}:{tmp+3}], v{flag_addr_v}')
        p('s_waitcnt lgkmcnt(0)')
        p(f'v_min_u32 v{tmp}, v{tmp}, v{tmp+1}\nv_min3_u32 v{tmp}, v{tmp}, v{tmp+2}, v{tmp+3}')
    p(f'v_readfirstlane_b32 s12, v{tmp}')
    p(f's_cmp_ge_u32 s12, {need}')
    p(f's_cbranch_scc1 {D}')
    p('s_sub_u32 s42, s42, 1\ns_cmp_lg_u32 s42, 0')
    if sleep:
        p(f's_sleep {sleep}')
    p(f's_cbranch_scc1 {L}')
    p.label(D)

def get_nonce(tmp):
    L = newlabel('nonce'); D = newlabel('nonced'); F = newlabel('noncef')
    p(f's_mov_b32 s42, {SPIN}')
    p.wait_vm('nonce')
    p(f's_branch {F}')
    sv = list(p.vm)
    p.label(L)
    p(f'v_mov_b32 v{tmp}, 0')
    p(f'global_load_dwordx2 v[{tmp}:{tmp+1}], v{tmp}, s[38:39] sc1')
    p('s_waitcnt vmcnt(0)')
    p.vm = sv
    p.label(F)
    p(f'v_readfirstlane_b32 s76, v{tmp}\nv_readfirstlane_b32 s77, v{tmp+1}')
    p('s_cmp_lg_u32 s76, 0')
    p(f's_cbranch_scc1 {D}')
    p('s_sub_u32 s42, s42, 1\ns_cmp_lg_u32 s42, 0')
    p(f's_cbranch_scc1 {L}')
    p.label(D)

def cnt_add(one, zero, soff, imm=0, tag=None):
    p('s_mov_b64 exec, 1')
    p(f'buffer_atomic_add v{one}, v{zero}, s[56:59], {soff} offen offset:{imm} sc1', tag)
    p('s_mov_b64 exec, -1')
def cnt_read(dst, zero, soff, imm=0, tag=None):
    p(f'v_mov_b32 v{dst}, 0')
    p('s_mov_b64 exec, 1')
    p(f'buffer_atomic_add v{dst}, v{zero}, s[56:59], {soff} offen offset:{imm} sc0 sc1', tag)
    p('s_mov_b64 exec, -1')
def cnt_wait(dst, zero, soff, imm, need, first_tag=None):
    L = newlabel('cw'); D = newlabel('cwd'); F = newlabel('cwf')
    p(f's_mov_b32 s42, {SPIN}')
    if first_tag:
        p.wait_vm(first_tag)
        p(f's_branch {F}')
    saved = list(p.vm)
    p.label(L)
    cnt_read(dst, zero, soff, imm)
    p('s_waitcnt vmcnt(0)')
    if first_tag:
        p.vm = saved
        p.label(F)
    p(f'v_readfirstlane_b32 s12, v{dst}')
    p(f's_cmp_ge_u32 s12, {need}')
    p(f's_cbranch_scc1 {D}')
    p('s_sub_u32 s42, s42, 1\ns_cmp_lg_u32 s42, 0')
    if SLP:
        p(f's_sleep {SLP}')
    p(f's_cbranch_scc1 {L}')
    p.label(D)

def run(thunks):
    for t in thunks:
        t()
def E(lst, s, tag=None): lst.append(lambda s=s: p(s, tag))

p.raw(f'; @launch grid=(256,1,1) block=(512,1,1) lds={LDS_SIZE}')
p.raw('.amdgcn_target "amdgcn-amd-amdhsa--gfx950"\n.text')
p.raw(f'.globl {KNAME}\n.p2align 8\n.type {KNAME},@function\n{KNAME}:')
p('s_getpc_b64 s[14:15]')
p.raw('L_code_start:')
p('s_cmp_ge_u32 s2, 256')
p('s_cbranch_scc1 L_end')
stamp('start')
names['B'].append('start')
p('''
s_load_dwordx16 s[16:31], s[0:1], 0
s_load_dwordx8 s[32:39], s[0:1], 64
s_load_dwordx2 s[40:41], s[0:1], 96
s_memrealtime s[76:77]
v_lshrrev_b32 v1, 6, v0
v_and_b32 v0, 63, v0
v_readfirstlane_b32 s3, v1
v_lshlrev_b32 v7, 4, v0
s_lshr_b32 s5, s2, 3
s_cmp_lg_u32 s3, 7
s_cbranch_scc1 L_nopf
s_mov_b32 s72, s14
s_mov_b32 s73, s15
s_mov_b32 s74, L_code_end-L_code_start
s_mov_b32 s75, 0x00020000
s_lshl_b32 s12, s5, 10
buffer_load_dwordx4 v[248:251], v7, s[72:75], s12 offen
''')
p.label('L_nopf')
p(f'''
v_mov_b32 v8, 0
v_lshlrev_b32 v9, 2, v0
v_add_u32 v9, {FL}, v9
ds_write_b32 v9, v8
s_and_b32 s4, s2, 7
s_lshr_b32 s12, s5, 2
s_and_b32 s13, s5, 3
s_lshr_b32 s6, s4, 2
s_lshl_b32 s6, s6, 3
s_add_u32 s6, s6, s12
s_and_b32 s7, s4, 3
s_lshl_b32 s7, s7, 2
s_add_u32 s7, s7, s13
s_lshr_b32 s8, s4, 1
s_lshl_b32 s8, s8, 3
s_add_u32 s8, s8, s12
s_and_b32 s9, s4, 1
s_lshl_b32 s9, s9, 2
s_add_u32 s9, s9, s13
s_lshl_b32 s13, s13, 1
s_add_u32 s10, s12, s13
s_and_b32 s10, s10, 7
s_and_b32 s11, s3, 3
''')
if ROT == 0:
    p('s_mov_b32 s10, 0')
elif ROT == 1:
    p('s_and_b32 s10, s10, 4')
p('''
v_lshrrev_b32 v8, 3, v0
v_and_b32 v9, 7, v0
v_lshrrev_b32 v10, 4, v0
v_xor_b32 v11, v9, v10
v_lshlrev_b32 v11, 4, v11
v_lshl_add_u32 v2, v8, 10, v11
v_xor_b32 v11, 64, v11
v_lshl_add_u32 v3, v8, 10, v11
v_add_u32 v3, 8192, v3
s_mov_b32 s12, 0x15555556
s_mov_b32 s13, 2752
''')
for j in range(3):
    p(f'''
    v_add_u32 v8, {64*j}, v0
    v_mul_hi_u32 v9, v8, s12
    v_mul_u32_u24 v10, 12, v9
    v_sub_u32 v10, v8, v10
    v_mul_lo_u32 v9, v9, s13
    v_lshl_add_u32 v{4+j}, v10, 4, v9
    ''')
p(f'''
s_lshl_b32 s48, s6, 17
s_lshl_b32 s12, s11, 15
s_add_u32 s48, s48, s12
s_lshr_b32 s12, s11, 1
s_mul_i32 s49, s12, {32*2752}
s_mul_i32 s13, s7, 192
s_add_u32 s49, s49, s13
s_lshl_b32 s50, s11, 12
s_mul_i32 s51, s12, 6144
s_and_b32 s13, s11, 1
s_mul_i32 s13, s13, {U_OFF-G_OFF}
s_add_u32 s51, s51, s13
s_add_u32 s51, s51, {G_OFF}
s_cmp_eq_u32 s7, 15
s_cselect_b32 s46, 0, 0x200000
s_cselect_b32 s54, 0, 1409024
s_mov_b32 s47, 0x00020000
s_mov_b32 s55, 0x00020000
''')
p('s_waitcnt lgkmcnt(0)')
p('s_barrier')
p('s_lshr_b32 s0, s11, 1\ns_and_b32 s1, s11, 1')
p('s_mov_b32 s44, s16\ns_mov_b32 s45, s17')
p('s_bitcmp1_b32 s3, 0')
p('s_cselect_b32 s52, s32, s30\ns_cselect_b32 s53, s33, s31')
srd(56, 40, 41, WS_SIZE)

xf = ' nt' if NT_X else ''
wf = ' nt' if NT_W else ''
def g1_dma(c):
    slot = (c % 3) * SLOT
    t = []
    def head():
        p(f's_add_u32 s12, s10, {c}\ns_and_b32 s12, s12, 7\ns_lshl_b32 s74, s12, 7\ns_add_u32 s74, s74, s48')
        p(f's_mul_i32 s75, s12, {64*2752}\ns_add_u32 s75, s75, s49')
    t.append(head)
    for i in range(4):
        def f(i=i):
            if i == 2:
                p('s_add_u32 s74, s74, 16384')
            p(f's_add_u32 m0, s50, {slot + i*1024}')
            p(f'buffer_load_dwordx4 v{2 + (i & 1)}, s[44:47], s74 offen{xf} lds', tag=f'c{c}')
        t.append(f)
    for i in range(6):
        def f(i=i):
            if i == 3:
                p(f's_add_u32 s75, s75, {16*2752}')
            p(f's_add_u32 m0, s51, {slot + i*1024}')
            p(f'buffer_load_dwordx4 v{4 + i % 3}, s[52:55], s75 offen{wf} lds', tag=f'c{c}')
        t.append(f)
    return t

p('s_cmp_ge_u32 s3, 4')
p('s_cbranch_scc1 L_groupB')

LT = newlabel('tag')
p('s_xor_b32 s12, s2, 27\ns_or_b32 s12, s12, s3\ns_cmp_lg_u32 s12, 0')
p(f's_cbranch_scc1 {LT}')
p('s_or_b32 s76, s76, 1')
p(f"""
v_mov_b32 v8, 0
v_mov_b32 v9, 0
v_mov_b32 v10, 0
v_mov_b32 v11, 0
v_lshlrev_b32 v12, 7, v0
s_mov_b32 s12, {WS_FH}
s_mov_b32 s13, {WS_FH + 8192}
buffer_store_dwordx4 v[8:11], v12, s[56:59], s12 offen sc1
buffer_store_dwordx4 v[8:11], v12, s[56:59], s13 offen sc1
v_mov_b32 v12, s76
v_mov_b32 v13, s77
s_waitcnt vmcnt(0)
s_mov_b64 exec, 1
global_store_dwordx2 v10, v[12:13], s[38:39] sc1
s_mov_b64 exec, -1
""")
p.label(LT)
p.reset_counters()
run(g1_dma(0)); run(g1_dma(1))
stamp('issued01')
p(f'''
v_and_b32 v20, 31, v0
v_lshrrev_b32 v21, 5, v0
v_bfe_u32 v22, v0, 1, 3
v_xor_b32 v22, v21, v22
s_lshl_b32 s42, s0, 1
v_xor_b32 v22, s42, v22
s_lshl_b32 s42, s0, 13
v_lshl_add_u32 v20, v20, 7, s42
''')
for s in range(4):
    p(f'v_xor_b32 v23, {2*s}, v22\nv_lshl_add_u32 v{8+s}, v23, 4, v20\nv_add_u32 v{12+s}, {2*SLOT}, v{8+s}')
p(f'''
v_bfe_u32 v20, v0, 4, 1
v_mul_u32_u24 v20, {U_OFF-G_OFF}, v20
v_bfe_u32 v22, v0, 2, 2
v_lshl_add_u32 v22, v21, 3, v22
v_mul_u32_u24 v22, 192, v22
v_and_b32 v23, 3, v0
v_lshl_add_u32 v20, v23, 3, v20
s_mul_i32 s42, s1, 96
s_add_u32 s42, s42, {G_OFF}
v_add3_u32 v20, v20, v22, s42
s_mul_i32 s42, s0, 3072
v_add_u32 v16, s42, v20
v_subrev_u32 v17, s42, v20
v_add_u32 v18, {2*SLOT}, v16
v_add_u32 v19, {2*SLOT}, v17
v_lshrrev_b32 v20, 2, v0
v_lshrrev_b32 v21, 4, v0
v_xor_b32 v20, v20, v21
v_and_b32 v20, 1, v20
v_cmp_eq_u32 vcc, 0, v20
v_mov_b32 v21, 0x3f803f80
v_cndmask_b32 v36, 0, v21, vcc
v_mov_b32 v37, v36
v_mov_b32 v38, v36
v_mov_b32 v39, v36
''')
ACC = 128
def acc(tbk, j): return ACC + 16 * (3 * tbk + j)
def FS(g): return 64 + 20 * (g % 3)
def g1_reads(g):
    c, s = divmod(g, 4)
    slot = c % 3
    xa = (12 if slot == 2 else 8) + s
    wa = (18 if slot == 2 else 16) + (s & 1)
    so = SLOT if slot == 1 else 0
    b = FS(g)
    def xr(tbk): return lambda: p(f'ds_read_b128 v[{b+4*tbk}:{b+4*tbk+3}], v{xa} offset:{so + 4096*tbk}', tag=f'r{g}')
    def wr(j, h): return lambda: p(f'ds_read_b64_tr_b16 v[{b+8+4*j+2*h}:{b+9+4*j+2*h}], v{wa} offset:{so + s*3072 + j*32 + h*768}', tag=f'r{g}')
    return [xr(0), wr(0, 0), wr(0, 1), xr(1), wr(1, 0), wr(1, 1), wr(2, 0), wr(2, 1)]
def g1_mfma(g):
    b = FS(g); t = []
    for j in range(3):
        for tbk in range(2):
            a = acc(tbk, j)
            cin = '0' if g == 0 else f'v[{a}:{a+15}]'
            t.append(lambda a=a, j=j, tbk=tbk, cin=cin: p(f'v_mfma_f32_32x32x16_bf16 v[{a}:{a+15}], v[{b+8+4*j}:{b+11+4*j}], v[{b+4*tbk}:{b+4*tbk+3}], {cin}'))
    return t
def csum(ge, j):
    b = FS(ge)
    cin = '0' if ge == 0 else f'v[{24+4*j}:{27+4*j}]'
    p(f'v_mfma_f32_16x16x32_bf16 v[{24+4*j}:{27+4*j}], v[36:39], v[{b+8+4*j}:{b+11+4*j}], {cin}')

p(f"""
s_lshl_b32 s12, s11, 2
s_add_u32 s12, s12, {FL_AP}
v_mov_b32 v253, s12
v_mov_b32 v254, {FL_AP}
v_mov_b32 v20, 1
v_mov_b32 v21, 2
""")
p.wait_vm('c0')
p('ds_write_b32 v253, v20')
lds_wait(254, 1, 40)
stamp('bar0')
run(g1_reads(0))
for g in range(32):
    c, s = divmod(g, 4)
    p('s_waitcnt lgkmcnt(0)')
    if s == 3 and c < 7:
        if c == 0:
            p.wait_vm('c1')
            p('ds_write_b32 v253, v21')
            lds_wait(254, 2, 40)
        else:
            p('s_barrier')
        stamp(f'bar{c+1}')
    m = g1_mfma(g)
    r = g1_reads(g + 1) if g < 31 else []
    for k in range(6):
        m[k]()
        for x in r[2 * k:2 * k + 2]:
            x()
        if (g & 1) == 0 and k in (1, 4):
            csum(g, 0 if k == 1 else 1)
        if (g & 1) == 1 and k == 2:
            csum(g - 1, 2)
stamp('g1end')
p(f'''
s_mul_i32 s12, s11, 768
s_add_u32 s12, s12, {CSUM}
v_lshl_add_u32 v20, v0, 2, s12
s_xor_b32 s13, s11, 2
s_mul_i32 s13, s13, 768
s_add_u32 s13, s13, {CSUM}
v_lshl_add_u32 v21, v0, 2, s13
ds_write_b32 v20, v24
ds_write_b32 v20, v28 offset:256
ds_write_b32 v20, v32 offset:512
''')
p(f'''
v_mov_b32 v2, 3
s_waitcnt lgkmcnt(0)
ds_write_b32 v253, v2
''')
p(f"""
v_and_b32 v1, 31, v0
s_lshl_b32 s12, s0, 9
s_add_u32 s12, s12, {STL}
v_lshl_add_u32 v1, v1, 3, s12
v_mov_b32 v22, {FL_BS}
""")
lds_wait(22, 1, 2)
p('ds_read_b64 v[40:41], v1\nds_read_b64 v[44:45], v1 offset:256')
lds_wait(254, 3, 2)
p('ds_read_b32 v25, v21\nds_read_b32 v29, v21 offset:256\nds_read_b32 v33, v21 offset:512')
p('s_waitcnt lgkmcnt(0)')
stamp('stats')
p('v_cmp_gt_u32 vcc, 32, v0')
for j in range(3):
    b = 64 + 4 * j; c = 24 + 4 * j
    p(f'''
    v_add_f32 v{c}, v{c}, v{c+1}
    v_cvt_pk_bf16_f32 v{c+1}, 0, v{c}
    v_sub_f32 v{c+2}, v{c}, v{c+1}
    v_cvt_pk_bf16_f32 v{c+3}, 0, v{c+2}
    v_sub_f32 v{c+2}, v{c+2}, v{c+3}
    v_cvt_pk_bf16_f32 v{b}, v{c+1}, v{c+3}
    v_cvt_pk_bf16_f32 v{b+1}, v{c+2}, 0
    v_mov_b32 v{b+2}, 0
    v_mov_b32 v{b+3}, 0
    ''')
for tbk in range(2):
    b = 76 + 4 * tbk; st = 40 + 4 * tbk; R = 48 + 4 * tbk
    p(f'''
    v_cndmask_b32 v{st}, 0, v{st}, vcc
    v_rcp_f32 v{R}, v{st+1}
    v_cvt_pk_bf16_f32 v{b}, v{st}, v{st}
    v_cvt_pk_bf16_f32 v{b+1}, v{st}, 0
    v_mov_b32 v{b+2}, 0
    v_mov_b32 v{b+3}, 0
    v_mov_b32 v{R+1}, v{R}
    v_mov_b32 v{R+2}, v{st+1}
    v_mov_b32 v{R+3}, v{st+1}
    ''')
for j in range(3):
    for tbk in range(2):
        a = acc(tbk, j)
        p(f'v_mfma_f32_32x32x16_bf16 v[{a}:{a+15}], v[{64+4*j}:{67+4*j}], v[{76+4*tbk}:{79+4*tbk}], v[{a}:{a+15}]')
K1 = 2.0 * math.sqrt(2.0 / math.pi) * math.log2(math.e)
K2 = K1 * 0.044715
p(f'''
s_lshl_b32 s12, s6, 2
s_lshl_b32 s13, s0, 1
s_add_u32 s12, s12, s13
s_mul_i32 s12, s12, {H_TB}
''')
srd_off(60, 40, 41, 's12', H_TB)
p(f's_add_u32 s12, s12, {H_TB}')
srd_off(64, 40, 41, 's12', H_TB)
p(f'''
s_lshl_b32 s13, s7, 1
s_add_u32 s13, s13, s1
s_mul_i32 s74, s13, 3072
s_lshl_b32 s12, s6, 1
s_add_u32 s12, s12, s0
s_lshl_b32 s12, s12, 8
s_cmp_ge_u32 s13, 15
s_cselect_b32 s42, 128, 0
s_add_u32 s12, s12, s42
s_add_u32 s75, s12, {WS_FH}
s_cmp_ge_u32 s13, 30
s_cselect_b32 s75, {WS_SIZE}, s75
s_mov_b32 s68, {f32(-K2)}
s_mov_b32 s69, {f32(-K2)}
v_mov_b32 v56, {f32(-K1)}
v_mov_b32 v57, {f32(-K1)}
v_mov_b32 v246, 0
v_mov_b32 v247, 1
''')
def h_flag(j):
    p.wait_vm(f'hst{j}')
    cnt_add(247, 246, 's75', 4 * j)
for j in range(3):
    for tbk in range(2):
        a = acc(tbk, j); R = 48 + 4 * tbk
        T = 84 + 20 * tbk
        for q in range(4):
            p(f'v_pk_mul_f32 v[{a+2*q}:{a+2*q+1}], v[{a+2*q}:{a+2*q+1}], v[{R}:{R+1}]')
        for q in range(4):
            p(f'v_pk_mul_f32 v[{T+2*q}:{T+2*q+1}], v[{a+2*q}:{a+2*q+1}], v[{a+2*q}:{a+2*q+1}]')
        for q in range(4):
            p(f'v_pk_fma_f32 v[{T+2*q}:{T+2*q+1}], v[{T+2*q}:{T+2*q+1}], s[68:69], v[56:57]')
        for q in range(4):
            p(f'v_pk_mul_f32 v[{T+2*q}:{T+2*q+1}], v[{T+2*q}:{T+2*q+1}], v[{a+2*q}:{a+2*q+1}]')
        for q in range(8):
            p(f'v_exp_f32 v{T+q}, v{T+q}')
            if q & 1:
                h = q >> 1
                p(f'v_pk_mul_f32 v[{a+2*h}:{a+2*h+1}], v[{a+2*h}:{a+2*h+1}], v[{a+8+2*h}:{a+9+2*h}]')
        for q in range(4):
            p(f'v_pk_fma_f32 v[{T+2*q}:{T+2*q+1}], v[{T+2*q}:{T+2*q+1}], v[{R+2}:{R+3}], v[{R+2}:{R+3}]')
        for q in range(8):
            p(f'v_rcp_f32 v{T+q}, v{T+q}')
        for q in range(4):
            p(f'v_pk_mul_f32 v[{T+2*q}:{T+2*q+1}], v[{T+2*q}:{T+2*q+1}], v[{a+2*q}:{a+2*q+1}]')
        for q in range(4):
            p(f'v_cvt_pk_bf16_f32 v{T+8+q}, v{T+2*q}, v{T+2*q+1}')
        p(f'buffer_store_dwordx4 v[{T+8}:{T+11}], v7, s[{60+4*tbk}:{63+4*tbk}], s74 offen offset:{1024*j} sc1', tag=f'hst{j}')
        if (j, tbk) == (2, 0):
            h_flag(0)
            stamp('hfl0')
    if j == 2:
        p('v_mov_b32 v2, 4\nds_write_b32 v253, v2')
        stamp('gelu')
p(f'''
v_lshrrev_b32 v20, 5, v0
v_bfe_u32 v21, v0, 2, 2
v_lshl_add_u32 v20, v20, 2, v21
v_lshlrev_b32 v20, 7, v20
v_bfe_u32 v22, v0, 4, 1
v_lshl_add_u32 v20, v22, 5, v20
v_and_b32 v22, 3, v0
v_lshl_add_u32 v20, v22, 3, v20
v_bfe_u32 v22, v0, 3, 1
v_lshl_add_u32 v21, v22, 6, v20
v_xor_b32 v22, 64, v21
s_mul_i32 s12, s0, 20480
v_add_u32 v250, s12, v21
v_add_u32 v251, s12, v22
v_add_u32 v248, {2*SLOT}, v250
v_add_u32 v249, {2*SLOT}, v251
v_mov_b32 v252, {FL_WD}
s_lshl_b32 s12, s0, 3
s_add_u32 s12, s12, {FL_AP}
v_mov_b32 v254, s12
''')
h_flag(1)
stamp('hfl1')
p(f"""
s_lshl_b32 s12, s8, 8
s_lshl_b32 s13, s0, 7
s_add_u32 s12, s12, s13
s_add_u32 s71, s12, {WS_FH}
s_mul_i32 s74, s0, {NSTEP*1024}
""")
def ld_fh(stage, tag=None):
    cnt_read(244, 246, 's71', 4 * stage, tag)
ld_fh(0, 'fh')
lds_wait(252, 2, 2)
stamp('wd2')
PRE, HW, NW = 64, 184, 15
def AF(st): return PRE + 8 * st if st < 15 else 8 + 8 * (st % 3)
def g2_reads(st):
    r, off = wd_pos(st); b = AF(st)
    return [lambda dt=dt, h=h: p(f'ds_read_b64_tr_b16 v[{b+4*dt+2*h}:{b+4*dt+2*h+1}], v{248+2*r+dt} offset:{off + 1024*h}', tag=f'a{st}')
            for dt in range(2) for h in range(2)]
for st in range(15):
    run(g2_reads(st))
p(f"""
s_lshl_b32 s12, s8, 1
s_add_u32 s12, s12, s1
s_mul_i32 s12, s12, {H_TB}
""")
srd_off(60, 40, 41, 's12', H_TB)
p("""
v_mov_b32 v2, 5
s_waitcnt lgkmcnt(0)
ds_write_b32 v253, v2
""")
stamp('pre')
h_flag(2)
stamp('hfl2')
srd(64, 34, 35, 1376 * 1024)
p(f"""
v_lshrrev_b32 v8, 3, v0
v_and_b32 v9, 7, v0
v_bfe_u32 v10, v0, 4, 1
v_lshlrev_b32 v10, 2, v10
v_xor_b32 v9, v9, v10
v_lshlrev_b32 v9, 4, v9
v_lshl_add_u32 v8, v8, 10, v9
s_mul_i32 s68, s0, {NSTEP*16384}
s_lshl_b32 s12, s1, 13
s_add_u32 s68, s68, s12
s_lshl_b32 s12, s9, 7
s_add_u32 s68, s68, s12
s_mul_i32 s69, s0, 20480
s_lshl_b32 s12, s1, 10
s_add_u32 s69, s69, s12
""")
lds_wait(254, 5, 2, two=True)
for st in range(30, 45):
    r, off = wd_pos(st)
    p(f's_add_u32 s13, s68, {step_unit(st)*16384}')
    p(f's_add_u32 m0, s69, {WD_BASE[r] + off}')
    p('buffer_load_dwordx4 v8, s[64:67], s13 offen lds', tag='wd4')
stamp('wd4')
cnt_wait(244, 246, 's71', 0, 15, first_tag='fh')
stamp('fh0')
def h_load(st):
    b = HW + 4 * (st % NW)
    p(f's_add_u32 s12, s74, {step_unit(st)*1024}')
    p(f'buffer_load_dwordx4 v[{b}:{b+3}], v7, s[60:63], s12 offen sc1', tag=f'h{st}')
    if st in (15 - 8, 30 - 8):
        ld_fh(1 if st < 15 else 2, 'fh')
for st in range(LA):
    h_load(st)
for st in range(NSTEP):
    nl = st + LA
    if nl == 15:
        cnt_wait(244, 246, 's71', 4, 15, first_tag='fh')
        stamp('fh1')
    if nl == 30:
        cnt_wait(244, 246, 's71', 8, 15, first_tag='fh')
        stamp('fh2')
    if nl < NSTEP:
        h_load(nl)
    nxt = st + 2
    if nxt == 20:
        lds_wait(252, 3, 2)
    if nxt == 30:
        lds_wait(254, 6, 2, two=True)
    if st == 2:
        p('v_mov_b32 v2, 6\nds_write_b32 v253, v2')
    if st == 30:
        p('v_mov_b32 v2, 7\nds_write_b32 v253, v2')
    r = g2_reads(nxt) if 15 <= nxt < NSTEP else []
    p.wait_vm(f'h{st}')
    p.wait_lg(f'a{st}')
    if st in (0, 15, 30):
        stamp(f'st{st}')
    b = AF(st); hb = HW + 4 * (st % NW)
    for dt in range(2):
        cin = '0' if st == 0 else f'v[{32+16*dt}:{47+16*dt}]'
        p(f'v_mfma_f32_32x32x16_bf16 v[{32+16*dt}:{47+16*dt}], v[{b+4*dt}:{b+4*dt+3}], v[{hb}:{hb+3}], {cin}')
        for x in r[2 * dt:2 * dt + 2]:
            x()
stamp('g2end')
p(f'''
v_and_b32 v4, 31, v0
v_lshrrev_b32 v5, 5, v0
v_and_b32 v6, 7, v0
v_xor_b32 v5, v5, v6
s_mul_i32 s12, s0, 20480
s_lshl_b32 s13, s1, 13
s_add_u32 s12, s12, s13
s_add_u32 s12, s12, {SLOT}
v_lshl_add_u32 v4, v4, 8, s12
''')
for q in range(4):
    p(f'v_xor_b32 v6, {2*q}, v5\nv_lshl_add_u32 v{8+q}, v6, 4, v4')
lds_wait(254, 7, 12, two=True)
for dt in range(2):
    for q in range(4):
        p(f'ds_write_b128 v{8+q}, v[{32+16*dt+4*q}:{35+16*dt+4*q}] offset:{128*dt}')
p('v_mov_b32 v4, 8')
p('s_waitcnt lgkmcnt(0)')
p('ds_write_b32 v253, v4')
stamp('done')
if PROF:
    p('s_waitcnt lgkmcnt(0)')
p('s_branch L_fin')

p.raw('.p2align 3')
p.label('L_groupB')
p.reset_counters(); p.reset_hist()
grp[0] = 'B'
kvf = ' nt' if NT_KV else ''
wdf = ' nt' if NT_WD else ''
UT = CONV
KR, VR, KU, TAP, KV, XU = 32, 44, 70, 96, 104, 160
CA = 32

def b_setup():
    srd(60, 18, 19, 0x200000)
    srd(64, 20, 21, 0x200000)
    srd(68, 16, 17, 0x200000)
    srd(80, 34, 35, 1376 * 1024)
    p(f"""
    s_lshl_b32 s12, s2, 1
    s_add_u32 s12, s12, s0
    s_lshl_b32 s13, s12, 1
    v_mov_b32 v8, s13
    s_mul_i32 s13, s12, {UR_P}
    s_add_u32 s13, s13, {WS_UR}
    s_lshl_b32 s12, s12, 12
    """)
    srd_off(84, 40, 41, 's13', 8192)
    srd_off(28, 24, 25, 's12', 4096)
    p(f"""
    v_lshrrev_b32 v144, 5, v0
    v_and_b32 v145, 31, v0
    s_lshl_b32 s12, s8, 16
    s_lshl_b32 s13, s11, 14
    s_add_u32 s12, s12, s13
    s_lshl_b32 s13, s9, 7
    s_add_u32 s88, s12, s13
    s_add_u32 s89, s88, 8192
    v_lshlrev_b32 v146, 13, v144
    v_lshl_add_u32 v146, v145, 2, v146
    v_add_u32 v146, s88, v146
    v_subrev_u32 v147, 4096, v146
    v_add_u32 v150, 4096, v146
    s_lshl_b32 s12, s9, 9
    v_lshl_add_u32 v151, v145, 4, s12
    s_lshl_b32 s12, s8, 16
    s_lshl_b32 s13, s9, 13
    s_add_u32 s12, s12, s13
    s_lshl_b32 s13, s11, 11
    s_add_u32 s21, s12, s13
    s_mul_i32 s43, s0, {CH_SZ}
    s_add_u32 s43, s43, {CONV}
    v_mov_b32 v215, 0
    v_mov_b32 v254, 1
    s_mul_i32 s12, s1, {HC1-4}
    s_add_u32 s12, s12, s43
    s_add_u32 s33, s12, 64
    v_mov_b32 v9, s33
    """)
    p(f"""
    s_and_b32 s12, s11, 1
    s_lshl_b32 s12, s12, 3
    s_lshl_b32 s13, s0, 1
    s_add_u32 s12, s12, s13
    v_lshl_add_u32 v152, v144, 2, s12
    v_and_b32 v210, 7, v145
    v_lshlrev_b32 v210, 1, v210
    v_xor_b32 v152, v152, v210
    v_lshlrev_b32 v152, 4, v152
    v_lshl_add_u32 v152, v145, 9, v152
    v_add_u32 v152, {UT}, v152
    s_lshl_b32 s12, s11, 12
    s_add_u32 s12, s12, {UT}
    v_add_u32 v153, s12, v7
    v_lshrrev_b32 v18, 3, v0
    v_and_b32 v19, 7, v0
    v_lshrrev_b32 v210, 4, v0
    v_and_b32 v211, 15, v0
    v_lshrrev_b32 v212, 5, v0
    v_lshlrev_b32 v212, 1, v212
    v_xor_b32 v211, v211, v212
    v_lshlrev_b32 v210, 13, v210
    """)
    for i in range(4):
        p(f'v_xor_b32 v212, {4*i}, v211\nv_lshl_add_u32 v{154+i}, v212, 4, v210')
    p(f"""
    s_lshl_b32 s12, s9, 6
    s_lshl_b32 s13, s11, 4
    s_add_u32 s12, s12, s13
    s_lshl_b32 s12, s12, 13
    s_lshl_b32 s13, s8, 8
    s_add_u32 s12, s12, s13
    s_add_u32 s16, s12, {WS_UR}
    s_lshl_b32 s12, s11, 2
    s_add_u32 s13, s12, {FL_WD}
    v_mov_b32 v22, s13
    s_add_u32 s13, s12, {FL_BS}
    v_mov_b32 v23, s13
    v_mov_b32 v252, {FL_BS}
    v_mov_b32 v253, {FL_AP}
    """)

def zero_fill():
    p(f"""
    v_mov_b32 v192, 0
    v_mov_b32 v193, 0
    v_mov_b32 v194, 0
    v_mov_b32 v195, 0
    s_mul_i32 s12, s1, {HC1}
    s_add_u32 s12, s12, s43
    v_lshl_add_u32 v210, v0, 2, s12
    s_lshr_b32 s12, 0xffff, s1
    s_mov_b32 s13, 0
    s_mov_b64 exec, s[12:13]
    ds_write_b32 v210, v192
    s_mov_b64 exec, -1
    s_add_u32 s12, s43, {UIMG}
    v_add_u32 v211, s12, v7
    ds_write_b128 v211, v[192:195]
    """)

def b_setup2():
    p(f"""
    v_bfe_u32 v210, v0, 4, 1
    v_lshlrev_b32 v210, 2, v210
    v_xor_b32 v210, v19, v210
    v_lshlrev_b32 v210, 4, v210
    v_lshl_add_u32 v12, v18, 10, v210
    s_mul_i32 s78, s0, {NSTEP*16384}
    s_lshl_b32 s12, s1, 13
    s_add_u32 s78, s78, s12
    s_lshl_b32 s12, s9, 7
    s_add_u32 s78, s78, s12
    s_mul_i32 s79, s0, 20480
    s_lshl_b32 s12, s1, 10
    s_add_u32 s79, s79, s12
    v_lshlrev_b32 v20, 10, v18
    v_lshl_add_u32 v20, v19, 4, v20
    s_lshl_b32 s12, s8, 10
    s_lshl_b32 s13, s11, 8
    s_add_u32 s12, s12, s13
    s_add_u32 s18, s12, {WS_ST}
    v_lshlrev_b32 v21, 4, v18
    s_lshr_b32 s12, s2, 3
    s_lshl_b32 s12, s12, 7
    s_add_u32 s19, s12, {WS_FU}
    s_lshr_b32 s12, s5, 2
    s_lshl_b32 s12, s12, 2
    s_add_u32 s12, s12, s11
    s_mul_i32 s12, s12, {44*1024}
    s_lshl_b32 s13, s9, 7
    s_add_u32 s73, s12, s13
    v_lshlrev_b32 v249, 10, v0
    v_and_b32 v10, 31, v0
    s_lshl_b32 s12, s11, 8
    s_add_u32 s12, s12, {STL}
    v_lshl_add_u32 v11, v10, 3, s12
    v_lshlrev_b32 v10, 4, v10
    s_lshl_b32 s12, s6, 11
    s_lshl_b32 s13, s11, 9
    s_add_u32 s12, s12, s13
    s_add_u32 s32, s12, {WS_ST}
    s_lshr_b32 s12, s2, 5
    s_lshl_b32 s12, s12, 2
    s_add_u32 s12, s12, s11
    s_lshl_b32 s12, s12, 7
    s_add_u32 s34, s12, {WS_FY}
    s_lshl_b32 s12, s9, 2
    s_lshr_b32 s13, s8, 3
    s_add_u32 s12, s12, s13
    s_lshl_b32 s12, s12, 7
    s_add_u32 s35, s12, {WS_FY}
    """)
    p(f"""
    v_and_b32 v214, 3, v0
    v_bfe_u32 v210, v0, 2, 2
    v_lshrrev_b32 v211, 4, v0
    v_lshlrev_b32 v214, 4, v214
    v_lshl_add_u32 v214, v210, 8, v214
    v_lshl_add_u32 v214, v211, 6, v214
    s_lshl_b32 s12, s1, 12
    v_add_u32 v214, s12, v214
    s_add_u32 s12, s12, s43
    s_add_u32 s72, s12, {UIMG + 1024}
    """)
    p(f"""
    v_and_b32 v210, 15, v0
    v_and_b32 v212, 1, v0
    v_lshlrev_b32 v13, 2, v210
    v_lshlrev_b32 v213, 4, v211
    v_sub_u32 v13, v13, v213
    v_xor_b32 v213, 1, v212
    v_mul_u32_u24 v213, {HC1-4}, v213
    s_lshl_b32 s12, s1, 8
    s_add_u32 s12, s12, s43
    s_add_u32 s12, s12, 52
    v_add3_u32 v13, v13, v213, s12
    v_lshrrev_b32 v210, 1, v210
    v_lshlrev_b32 v211, 8, v211
    v_lshl_add_u32 v211, v212, 4, v211
    s_add_u32 s12, s43, {UIMG}
    v_add_u32 v211, s12, v211
    s_lshl_b32 s12, s1, 2
    s_sub_u32 s12, 8, s12
    v_add_u32 v210, s12, v210
    """)
    for i in range(4):
        p(f"""
        v_subrev_u32 v212, {i}, v210
        v_lshrrev_b32 v213, 3, v212
        v_and_b32 v212, 7, v212
        v_lshl_add_u32 v213, v213, 10, v211
        v_lshl_add_u32 v{14+i}, v212, 5, v213
        """)

def k_loads():
    for i in range(12):
        p(f'buffer_load_dword v{KR+i}, v{(147, 146, 150)[i >> 2]}, s[60:63], 0 offen offset:{1024*(i&3)}{kvf}', tag='kv')
    p('buffer_load_dwordx4 v[60:63], v7, s[68:71], s21 offen', tag='strow')
    p('buffer_load_dwordx4 v[64:67], v7, s[68:71], s21 offen offset:1024', tag='strow')
    p('global_load_dwordx2 v[58:59], v215, s[38:39] sc1', tag='nonce')
def v_loads():
    p(f'buffer_load_dword v{VR}, v147, s[64:67], 0 offen offset:3072{kvf}', tag='kv')
    for i in range(8):
        p(f'buffer_load_dword v{VR+1+i}, v{146 if i < 4 else 150}, s[64:67], 0 offen offset:{1024*(i%4)}{kvf}', tag='kv')
    p('global_load_dwordx4 v[54:57], v151, s[22:23]', tag='kv')

def collect(fn):
    global p
    real = p; rec = []
    class R:
        def __call__(self, text, tag=None):
            for line in text.strip().split('\n'):
                if line.strip():
                    rec.append(lambda line=line, tag=tag: real(line, tag))
        def wait_vm(self, tag): rec.append(lambda: real.wait_vm(tag))
        def wait_lg(self, tag): rec.append(lambda: real.wait_lg(tag))
    p = R()
    try:
        fn()
    finally:
        p = real
    return rec

def p_compute1():
    p.wait_vm('kv')
    for j in range(4):
        src0 = 54 + (j >> 1); src1 = 56 + (j >> 1)
        if j & 1:
            p(f'v_and_b32 v{TAP+2*j}, 0xffff0000, v{src0}\nv_and_b32 v{TAP+2*j+1}, 0xffff0000, v{src1}')
        else:
            p(f'v_lshlrev_b32 v{TAP+2*j}, 16, v{src0}\nv_lshlrev_b32 v{TAP+2*j+1}, 16, v{src1}')
    for i in range(12):
        p(f'v_lshlrev_b32 v{KU+2*i}, 16, v{KR+i}\nv_and_b32 v{KU+2*i+1}, 0xffff0000, v{KR+i}')
    for t in range(18):
        p(f'v_mul_f32 v{KV+t}, v{KU+t}, v{TAP+6+(t&1)}')
    for j in (2, 1):
        for t in range(18):
            p(f'v_fmac_f32 v{KV+t}, v{KU+2*(3-j)+t}, v{TAP+2*j+(t&1)}')
def p_compute2():
    for t in range(18):
        p(f'v_fmac_f32 v{KV+t}, v{KU+6+t}, v{TAP+(t&1)}')
    for t in range(9):
        p(f'v_lshlrev_b32 v{KU+2*t}, 16, v{VR+t}\nv_and_b32 v{KU+2*t+1}, 0xffff0000, v{VR+t}')
    for t in range(18):
        p(f'v_mul_f32 v{KV+t}, v{KV+t}, v{KU+t}')
    for c in range(2):
        for par in range(2):
            b = 124 + 8 * c + 4 * par
            for i in range(4):
                p(f'v_cvt_pk_bf16_f32 v{b+i}, v{KV+2*(7+par-2*i)+c}, v{KV+2*(6+par-2*i)+c}')
            p(f'ds_write_b128 v152, v[{b}:{b+3}] offset:{256*c + 16*par}')

def u_store():
    for i in range(4):
        p(f'ds_read_b128 v[{124+4*i}:{127+4*i}], v153 offset:{1024*i}', tag=f'ut{i}')
    for i in range(4):
        p.wait_lg(f'ut{i}')
        p(f's_add_u32 s13, s16, {4*8192*i}')
        p(f'buffer_store_dwordx4 v[{124+4*i}:{127+4*i}], v{154+i}, s[56:59], s13 offen sc1', tag='ust')

def wave_sum2(a, b):
    for ctl in ('row_shr:1 row_mask:0xf bank_mask:0xf', 'row_shr:2 row_mask:0xf bank_mask:0xf', 'row_shr:4 row_mask:0xf bank_mask:0xf',
                'row_shr:8 row_mask:0xf bank_mask:0xf', 'row_bcast:15 row_mask:0xa bank_mask:0xf', 'row_bcast:31 row_mask:0xc bank_mask:0xf'):
        p(f'v_add_f32_dpp v{a}, v{a}, v{a} {ctl}')
        p(f'v_add_f32_dpp v{b}, v{b}, v{b} {ctl}')

def ln_stats():
    p.wait_vm('strow')
    S = 176
    for r in range(2):
        for i in range(4):
            p(f'v_lshlrev_b32 v{XU+8*r+2*i}, 16, v{60+4*r+i}\nv_and_b32 v{XU+8*r+2*i+1}, 0xffff0000, v{60+4*r+i}')
    for i in range(1, 8):
        for r in range(2):
            p(f'v_add_f32 v{S+r}, v{XU+8*r if i == 1 else S+r}, v{XU+8*r+i}')
    wave_sum2(S, S + 1)
    p(f'v_readlane_b32 s17, v{S}, 63\nv_readlane_b32 s20, v{S+1}, 63')
    p(f'v_mov_b32 v{S+2}, {f32(1.0/512)}')
    p(f'v_mul_f32 v{S+4}, s17, v{S+2}\nv_mul_f32 v{S+5}, s20, v{S+2}')
    for i in range(8):
        for r in range(2):
            p(f'v_sub_f32 v{XU+8*r+i}, v{XU+8*r+i}, v{S+4+r}')
    for i in range(8):
        for r in range(2):
            if i == 0:
                p(f'v_mul_f32 v{S+r}, v{XU+8*r}, v{XU+8*r}')
            else:
                p(f'v_fmac_f32 v{S+r}, v{XU+8*r+i}, v{XU+8*r+i}')
    wave_sum2(S, S + 1)
    p(f'v_readlane_b32 s17, v{S}, 63\nv_readlane_b32 s20, v{S+1}, 63')
    p(f"""
    v_cmp_eq_u32 vcc, 0, v0
    v_mov_b32 v{S}, s20
    v_mov_b32 v{S+1}, s17
    v_cndmask_b32 v{S}, v{S}, v{S+1}, vcc
    v_cndmask_b32 v{S+4}, v{S+5}, v{S+4}, vcc
    v_mul_f32 v{S}, v{S}, v{S+2}
    v_cvt_pk_bf16_f32 v{S}, 0, v{S}
    v_add_f32 v{S}, {f32(1e-5)}, v{S}
    v_cvt_pk_bf16_f32 v{S}, 0, v{S}
    v_sqrt_f32 v{S}, v{S}
    v_cvt_pk_bf16_f32 v{S+4}, 0, v{S+4}
    v_cvt_pk_bf16_f32 v{S+9}, 0, v{S}
    v_xor_b32 v{S+8}, 0x80000000, v{S+4}
    """)
def ln_store():
    S = 176
    p(f"""
    v_mov_b32 v{S+10}, s76
    v_mov_b32 v{S+11}, s77
    s_lshl_b32 s12, s8, 10
    s_lshl_b32 s13, s9, 7
    s_add_u32 s12, s12, s13
    s_lshl_b32 s13, s11, 5
    s_add_u32 s12, s12, s13
    s_add_u32 s12, s12, {WS_ST}
    s_mov_b64 exec, 3
    """)
    p(f'buffer_store_dwordx4 v[{S+8}:{S+11}], v7, s[56:59], s12 offen sc1', tag='stst')
    p('s_mov_b64 exec, -1')

def u_flag():
    p(f"""
    s_lshl_b32 s12, s9, 2
    s_add_u32 s12, s12, s11
    s_lshl_b32 s12, s12, 7
    s_add_u32 s13, s12, {WS_FU}
    """)
    p.wait_vm('ust')
    cnt_add(254, 215, 's13', 0, 'fu')
    stamp('fu')

def himg():
    p('s_mov_b32 m0, s33')
    for i in range(4):
        p(f'buffer_load_dwordx4 v7, s[28:31], 0 offen offset:{1024*i}{kvf} lds', tag='himg')
    p('global_load_ushort v8, v8, s[26:27]', tag='himg')
def tap_patch():
    p.wait_vm('himg')
    p('ds_read_u16 v210, v9')
    p('s_waitcnt lgkmcnt(0)')
    p("""
    v_lshlrev_b32 v210, 16, v210
    v_lshlrev_b32 v8, 16, v8
    v_add_f32 v8, v8, v210
    v_cvt_pk_bf16_f32 v8, v8, 0
    ds_write_b16 v9, v8
    """)
def ld_st2(tag=None):
    p('buffer_load_dwordx4 v[200:203], v21, s[56:59], s18 offen sc1', tag)
    p('buffer_load_dwordx4 v[204:207], v21, s[56:59], s18 offen offset:128 sc1', tag)
    p('buffer_load_dwordx4 v[196:199], v10, s[56:59], s32 offen sc1', tag)
def u_dma():
    p('s_mov_b32 m0, s72')
    for i in range(4):
        p(f'buffer_load_dwordx4 v214, s[84:87], 0 offen offset:{1024*i} sc1 lds', tag='uimg')
def wd_dma(steps, tag):
    t = []
    for st in steps:
        def f(st=st):
            r, off = wd_pos(st)
            p(f's_add_u32 s13, s78, {step_unit(st)*16384}')
            p(f's_add_u32 m0, s79, {WD_BASE[r] + off}')
            if len(p.vm) > THR:
                p(f's_waitcnt vmcnt({THR})')
            p(f'buffer_load_dwordx4 v12, s[80:83], s13 offen lds', tag=tag)
        t.append(f)
    return t
def wd_prefetch(k):
    p(f"""
    s_add_u32 s13, s73, {11*1024*k}
    s_mov_b64 exec, 0x7ff
    buffer_load_dword v248, v249, s[80:83], s13 offen{wdf}
    s_mov_b64 exec, -1
    """, tag='wdpf')
def xn_compute():
    p.wait_vm('xt')
    for j in range(2):
        st = 200 + 4 * j
        p(f'v_rcp_f32 v{st+2}, v{st+1}')
        p(f'v_mul_f32 v{st+3}, v{st}, v{st+2}')
        for i in range(4):
            x0 = 216 + 8 * j + 2 * i; n0 = 232 + 8 * j + 2 * i
            p(f'v_lshlrev_b32 v{x0}, 16, v{24+4*j+i}\nv_and_b32 v{x0+1}, 0xffff0000, v{24+4*j+i}')
            p(f'v_fma_f32 v{n0}, v{x0}, v{st+2}, v{st+3}\nv_fma_f32 v{n0+1}, v{x0+1}, v{st+2}, v{st+3}')
def set_flag(addr, val):
    p(f'v_mov_b32 v250, {val}\nds_write_b32 v{addr}, v250')
def CS(i): return 64 + 64 * (i & 1)
def cv_reads(i):
    b = CS(i); t = []
    for a in range(8):
        t.append(lambda a=a: p(f'ds_read_b128 v[{b+32+4*a}:{b+35+4*a}], v{14+i} offset:{1024*a}', tag=f'cv{i}_{a}'))
        for h in range(2):
            t.append(lambda a=a, h=h: p(f'ds_read_b64 v[{b+4*a+2*h}:{b+4*a+2*h+1}], v13 offset:{64*i + 512*a + 8*h}', tag=f'cv{i}_{a}'))
    return t
seen = set()
def cv_mfma(i):
    b = CS(i); t = []
    for m in range(8):
        pairs = [(m, bb) for bb in range(0, m + 1) if m + bb <= 7] + [(aa, m) for aa in range(0, m) if aa + m <= 7]
        for n, (a, bb) in enumerate(pairs):
            cb = a + bb
            first = (i == 0 and cb not in seen)
            seen.add(cb)
            cin = '0' if first else f'v[{CA+4*cb}:{CA+4*cb+3}]'
            def f(a=a, bb=bb, cb=cb, cin=cin, m=m, n=n):
                if n == 0:
                    p.wait_lg(f'cv{i}_{m}')
                p(f'v_mfma_f32_16x16x32_bf16 v[{CA+4*cb}:{CA+4*cb+3}], v[{b+4*a}:{b+4*a+3}], v[{b+32+4*bb}:{b+35+4*bb}], {cin}')
            t.append(f)
    return t
def cv_round(i, extra, reads=True):
    m = cv_mfma(i)
    r = cv_reads(i + 1) if (i < 3 and reads) else []
    m = interleave(m, r, start=0, every=1)
    run(interleave(m, extra, start=0, every=3))
def bar(n):
    p('s_barrier')
    stamp(f'bar{n}')

def cv_last():
    b = CS(3)
    order = [7, 6, 5, 4, 3, 2, 1, 0]
    done = []
    for n, cb in enumerate(order):
        for a in range(cb + 1):
            bb = cb - a
            p(f'v_mfma_f32_16x16x32_bf16 v[{CA+4*cb}:{CA+4*cb+3}], v[{b+4*a}:{b+4*a+3}], v[{b+32+4*bb}:{b+35+4*bb}], v[{CA+4*cb}:{CA+4*cb+3}]')
        if n == 0:
            lds_wait(252, 3, 192)
        if n >= 1:
            c = order[n - 1]
            p(f'ds_write_b128 v14, v[{CA+4*c}:{CA+4*c+3}] offset:{1024*c}')
    p(f'ds_write_b128 v14, v[{CA}:{CA+3}]')

def seg(c, slow, work, every):
    d = g1_dma(c) + slow
    w = collect(work) if work else []
    run(interleave(d, w, start=0, every=1) if not w else interleave2(d, w, every))
def interleave2(d, w, every):
    out = []; k = 0
    for x in d:
        out.append(x); out.extend(w[k:k+every]); k += every
    out.extend(w[k:])
    return out
b_setup()
b_setup2()
run(g1_dma(2))
k_loads()
stamp('iss2')
if PRIOB:
    p(f's_setprio {PRIOB}')
lds_wait(253, 2, 192, sleep=1)
run(g1_dma(3))
v_loads()
stamp('iss3')
p.wait_vm('c2')
bar(2)
seg(4, [lambda: wd_prefetch(0)], None, 0)
ln_stats()
get_nonce(58)
p.wait_vm('c3')
bar(3)
seg(5, [ln_store, lambda: wd_prefetch(1)], None, 0)
p_compute1()
p.wait_vm('c4')
bar(4)
seg(6, [lambda: wd_prefetch(2), lambda: wd_prefetch(3)], p_compute2, 3)
p.wait_vm('c5')
p('s_waitcnt lgkmcnt(0)')
bar(5)
run(g1_dma(7))
u_store()
ld_st2('st2')
p("""
buffer_load_dwordx4 v[24:27], v20, s[68:71], s88 offen
buffer_load_dwordx4 v[28:31], v20, s[68:71], s89 offen
""", tag='xt')
p.wait_vm('c6')
bar(6)
himg()
zero_fill()
p.wait_vm('c7')
bar(7)
u_flag()
w2 = wd_dma(list(range(0, 20)), 'wd2')
run(w2[:4])
poll_tag(ld_st2, [202, 206, 198], first_tag='st2')
p('ds_write_b64 v11, v[196:197]')
p('s_waitcnt lgkmcnt(0)')
set_flag(23, 1)
stamp('stok')
run(w2[4:14])
cnt_read(208, 215, 's19', 0, 'fu1')
run(w2[14:])
stamp('isswd')
tap_patch()
cnt_wait(208, 215, 's19', 0, 32, first_tag='fu1')
stamp('fuok')
u_dma()
p.wait_vm('wd2')
set_flag(22, 2)
stamp('wd2')
lds_wait(253, 3, 192, sleep=2)
w3 = wd_dma(list(range(20, 30)), 'wd3')
run(w3[:THR])
p.wait_vm('uimg')
p('s_waitcnt lgkmcnt(0)')
set_flag(23, 2)
run(w3[THR:])
lds_wait(252, 2, 192, sleep=2)
run(cv_reads(0)); run(cv_reads(1))
p.wait_vm('wd3')
set_flag(22, 3)
stamp('wd3')
lds_wait(253, 4, 192, sleep=2)
p(f's_setprio {opt("priocv", 0)}')
stamp('cvstart')
cv_round(0, [], reads=False)
cv_round(1, [])
cv_round(2, [])
p('s_waitcnt lgkmcnt(0)')
set_flag(23, 3)
p(f"""
s_lshl_b32 s12, s11, 13
s_add_u32 s12, s12, {CONV}
v_add_u32 v14, s12, v7
s_lshl_b32 s12, s11, 11
s_add_u32 s12, s12, {CONV}
v_add_u32 v15, s12, v7
""")
cv_last()
stamp('cvend')
p('s_waitcnt lgkmcnt(0)')
set_flag(23, 4)
p(f"""
v_and_b32 v16, 1, v0
v_cmp_eq_u32 vcc, 0, v16
v_bfe_u32 v17, v0, 1, 3
v_lshrrev_b32 v13, 4, v0
v_lshlrev_b32 v16, 4, v16
v_lshl_add_u32 v16, v17, 7, v16
v_lshl_add_u32 v16, v13, 5, v16
s_lshl_b32 s12, s2, 13
s_lshl_b32 s13, s11, 11
s_add_u32 s12, s12, s13
s_add_u32 s50, s12, {WS_Y}
""")
lds_wait(252, 4, 192)
for e in range(2):
    for w in range(4):
        p(f'ds_read_b128 v[{64+16*w+4*e}:{67+16*w+4*e}], v15 offset:{8192*w + 1024*e}', tag=f'rd{e}')
for e in range(2):
    p.wait_lg(f'rd{e}')
    if e == 1:
        set_flag(23, 5)
    for c in range(2):
        for h in range(4):
            a = 64 + 32 * c + 4 * e + h
            p(f'v_add_f32 v{a}, v{a}, v{a+16}')
    D = 128 + 8 * e
    for r in range(4):
        p(f'v_cvt_pk_bf16_f32 v{D+r}, v{64+4*e+r}, v{96+4*e+r}')
    p(f'v_cndmask_b32 v{D+4}, v{D}, v{D+2}, vcc\nv_cndmask_b32 v{D+5}, v{D+1}, v{D+3}, vcc')
    p(f'v_cndmask_b32 v{D+6}, v{D+2}, v{D}, vcc\nv_cndmask_b32 v{D+7}, v{D+3}, v{D+1}, vcc')
    p(f'v_mov_b32_dpp v{D}, v{D+4} quad_perm:[1,0,3,2] row_mask:0xf bank_mask:0xf')
    p(f'v_mov_b32_dpp v{D+1}, v{D+5} quad_perm:[1,0,3,2] row_mask:0xf bank_mask:0xf')
    O = 144 + 4 * e
    p(f'v_cndmask_b32 v{O}, v{D}, v{D+6}, vcc\nv_cndmask_b32 v{O+1}, v{D+6}, v{D}, vcc')
    p(f'v_cndmask_b32 v{O+2}, v{D+1}, v{D+7}, vcc\nv_cndmask_b32 v{O+3}, v{D+7}, v{D+1}, vcc')
    p(f'buffer_store_dwordx4 v[{O}:{O+3}], v16, s[56:59], s50 offen offset:{1024*e} sc1', tag='yst')
stamp('yst')
p(f"""
v_lshrrev_b32 v48, 2, v0
v_and_b32 v49, 3, v0
v_bfe_u32 v50, v0, 4, 2
v_xor_b32 v49, v49, v50
v_lshlrev_b32 v49, 4, v49
v_lshl_add_u32 v48, v48, 13, v49
s_lshl_b32 s12, s9, 18
s_lshl_b32 s13, s8, 8
s_add_u32 s12, s12, s13
s_lshl_b32 s13, s11, 6
s_add_u32 s12, s12, s13
s_add_u32 s48, s12, {WS_Y}
s_add_u32 s49, s48, {16*8192}
s_lshl_b32 s43, s11, 11
s_add_u32 s43, s43, {YT}
v_lshrrev_b32 v49, 5, v0
v_and_b32 v50, 3, v0
v_xor_b32 v49, v49, v50
v_lshlrev_b32 v49, 4, v49
v_lshl_add_u32 v49, v19, 8, v49
v_bfe_u32 v50, v0, 3, 2
v_lshl_add_u32 v49, v50, 2, v49
v_add_u32 v49, s43, v49
v_xor_b32 v50, 32, v49
v_lshlrev_b32 v52, 1, v19
v_xor_b32 v52, v52, v18
v_lshlrev_b32 v52, 4, v52
v_lshl_add_u32 v52, v18, 8, v52
s_lshl_b32 s12, s11, 12
s_add_u32 s12, s12, {SLOT}
v_add_u32 v52, s12, v52
v_xor_b32 v53, 16, v52
""")
srd(60, 36, 37, 0x200000)
xn_compute()
p.wait_vm('yst')
cnt_add(254, 215, 's34')
stamp('fy')
lds_wait(252, 5, 192)
cnt_wait(34, 215, 's35', 0, 32)
stamp('fyok')
p("""
s_mov_b32 m0, s43
buffer_load_dwordx4 v48, s[56:59], s48 offen sc1 lds
s_add_u32 m0, s43, 1024
buffer_load_dwordx4 v48, s[56:59], s49 offen sc1 lds
""", tag='yt')
p.wait_vm('yt')
for j in range(2):
    for i in range(4):
        p(f'ds_read_b32 v{96+4*j+i}, v{49+j} offset:{64*i}')
p('s_waitcnt lgkmcnt(0)')
for j in range(2):
    for i in range(4):
        x0 = 216 + 8 * j + 2 * i; n0 = 232 + 8 * j + 2 * i; y = 96 + 4 * j + i
        p(f"""
        v_lshlrev_b32 v104, 16, v{y}
        v_and_b32 v105, 0xffff0000, v{y}
        v_fmac_f32 v{x0}, v104, v{n0}
        v_fmac_f32 v{x0+1}, v105, v{n0+1}
        """)
stamp('base')
lds_wait(253, 8, 192)
stamp('part')
for j in range(2):
    for kh in range(2):
        for e in range(2):
            r = 108 + 16 * kh + 8 * j + 4 * e
            p(f'ds_read_b128 v[{r}:{r+3}], v{52+e} offset:{20480*kh + 2048*j}', tag=f'ps{j}')
for j in range(2):
    p.wait_lg(f'ps{j}')
    for i in range(4):
        a = 108 + 8 * j + 2 * i; x0 = 216 + 8 * j + 2 * i
        p(f"""
        v_pk_add_f32 v[{a}:{a+1}], v[{a}:{a+1}], v[{a+16}:{a+17}]
        v_pk_add_f32 v[{a}:{a+1}], v[{a}:{a+1}], v[{x0}:{x0+1}]
        v_cvt_pk_bf16_f32 v{64+4*j+i}, v{a}, v{a+1}
        """)
    p(f'buffer_store_dwordx4 v[{64+4*j}:{67+4*j}], v20, s[60:63], s{88+j} offen')
stamp('done')
if PROF:
    p('s_waitcnt lgkmcnt(0)')

p.label('L_fin')
if PROF:
    p('s_memrealtime s[12:13]')
    p('s_waitcnt lgkmcnt(0)')
    p('v_writelane_b32 v255, s12, 63')
    p(f's_lshl_b32 s42, s2, 3\ns_add_u32 s42, s42, s3\ns_lshl_b32 s42, s42, 8\ns_add_u32 s42, s42, {WS_PROF}')
    p('v_lshlrev_b32 v1, 2, v0')
    p('buffer_store_dword v255, v1, s[56:59], s42 offen')
p.label('L_end')
p('s_endpgm')
p.raw('L_code_end:')
p.raw(f'''.section .rodata,"a"
.p2align 6
.amdhsa_kernel {KNAME}
  .amdhsa_next_free_vgpr 256
  .amdhsa_next_free_sgpr 102
  .amdhsa_accum_offset 256
  .amdhsa_group_segment_fixed_size 0
  .amdhsa_kernarg_size 104
  .amdhsa_user_sgpr_count 2
  .amdhsa_user_sgpr_kernarg_segment_ptr 1
  .amdhsa_system_sgpr_workgroup_id_x 1
.end_amdhsa_kernel''')
open(OUT, 'w').write(open('hdr.txt').read() + p.text())
json.dump({'names': names, 'WS': dict(H_TB=H_TB, WS_UR=WS_UR, UR_P=UR_P, WS_Y=WS_Y, WS_ST=WS_ST, WS_PROF=WS_PROF, WS_SIZE=WS_SIZE)}, open(OUT + '.json', 'w'))
print('instructions:', p.nins, file=sys.stderr)
```
